```python
import torch

def _softmax(x, axis=-1):
    return torch.softmax(x, dim=axis)
def _gelu(x):
    return torch.nn.functional.gelu(x, approximate="tanh")
def _silu(x):
    return torch.nn.functional.silu(x)
def _sigmoid(x):
    return torch.sigmoid(x)
def _layernorm(x, axis=-1, eps=1e-5):
    m = x.mean(dim=axis, keepdim=True)
    v = x.var(dim=axis, keepdim=True, unbiased=False)
    return (x - m) / torch.sqrt(v + eps)
def _scatter_add(tgt, idx, src, axis=0):
    return tgt.clone().index_add_(axis, idx, src)
def _segment_sum(src, seg, n):
    out = torch.zeros((n,) + src.shape[1:], dtype=src.dtype)
    return out.index_add_(0, seg, src)
def _pad(x, pw):
    flat = tuple(v for pair in reversed(pw) for v in pair)
    return torch.nn.functional.pad(x, flat)

kernel_name = 'parallel_sum__linear_attn_block__swiglu_ffn__prompt'

def setup_inputs():

    _w = (lambda a: (lambda t: t.to(torch.bfloat16) if t.is_floating_point() else t)(torch.as_tensor(a)))
    def _A_setup():
        B, S, D = 1, 2048, 512
        return {
            "x": _w((lambda *s: torch.randn(*s, dtype=torch.bfloat16) * 0.05)(B, S, D)),
            "wqkv": _w((lambda *s: torch.randn(*s, dtype=torch.bfloat16) * 0.2)(D, 3 * D)),
            "wo": _w((lambda *s: torch.randn(*s, dtype=torch.bfloat16) * 0.2)(D, D)),
        }
    _A_in = _A_setup()

    def _B_setup():
        B, S, D, F = 1, 2048, 512, 1792
        return {
            "x": _w((lambda *s: torch.randn(*s, dtype=torch.bfloat16) * 0.05)(B, S, D)),
            "w_gate": _w((lambda *s: torch.randn(*s, dtype=torch.bfloat16) * 0.05)(D, F)),
            "w_up": _w((lambda *s: torch.randn(*s, dtype=torch.bfloat16) * 0.05)(D, F)),
            "w_down": _w((lambda *s: torch.randn(*s, dtype=torch.bfloat16) * 0.05)(F, D)),
        }
    _B_in = _B_setup()

    return {
        "A_x": _A_in["x"],
        "A_wqkv": _A_in["wqkv"],
        "A_wo": _A_in["wo"],
        "B_x": _B_in["x"],
        "B_w_gate": _B_in["w_gate"],
        "B_w_up": _B_in["w_up"],
        "B_w_down": _B_in["w_down"],
    }

def reference(A_x, A_wqkv, A_wo, B_x, B_w_gate, B_w_up, B_w_down):
    def _A_ref(x, wqkv, wo):
        B, S, D = x.shape
        H = 32; Dh = D // H
        qkv = (lambda x, *d: x.permute(*d))((x @ wqkv).reshape(B, S, 3, H, Dh), 2, 0, 3, 1, 4)
        q, k, v = qkv[0], qkv[1], qkv[2]
        phi = lambda t: torch.where(t > 0, t + 1, torch.exp(t)) + 1e-6
        pq, pk = phi(q), phi(k)
        kv = torch.einsum("bhsd,bhse->bhde", pk, v)
        z = torch.einsum("bhsd->bhd", pk)
        num = torch.einsum("bhqd,bhde->bhqe", pq, kv)
        den = torch.einsum("bhqd,bhd->bhq", pq, z)[..., None] + 1e-6
        o = num / den
        return (lambda x, *d: x.permute(*d))(o, 0, 2, 1, 3).reshape(B, S, D) @ wo

    def _B_ref(x, w_gate, w_up, w_down):
        g = _silu(x @ w_gate)
        u = x @ w_up
        return (g * u) @ w_down

    x = A_x
    xn = _layernorm(x, axis=-1)
    return x + _A_ref(xn, A_wqkv, A_wo) + _B_ref(xn, B_w_gate, B_w_up, B_w_down)
```

```python
import re

class Op:
    __slots__ = ('text', 'tag', 'waits', 'cost', 'raw')
    def __init__(self, text, tag=None, waits=(), cost=None, raw=False):
        self.text = text; self.tag = tag
        self.waits = [waits] if isinstance(waits, str) else list(waits)
        self.raw = raw
        if cost is None:
            cost = 2 if re.match(r'v_(exp|rcp|rsq|sqrt|log)_', text) else 1
        self.cost = cost
    def __repr__(self): return self.text

def opclass(t):
    m = t.split()[0]
    if m.endswith(':'): return 'label'
    if m.startswith('v_mfma'): return 'mfma'
    if m.startswith('ds_'): return 'ds'
    if m.startswith('buffer_') or m.startswith('global_'): return 'vm'
    if m.startswith('s_load') or m.startswith('s_memtime') or m.startswith('s_memrealtime'): return 'smem'
    if m.startswith('v_'): return 'valu'
    if m.startswith('s_'): return 'salu'
    return 'other'

REG = re.compile(r'(?<![\w.])(-?\|?)([vas])(?:\[(\d+):(\d+)\]|(\d+))(?![\w])')
def regs_of(opnd):
    out = set()
    for m in REG.finditer(opnd):
        k = m.group(2)
        if m.group(3) is not None:
            for i in range(int(m.group(3)), int(m.group(4)) + 1): out.add((k, i))
        else:
            out.add((k, int(m.group(5))))
    if re.search(r'\bvcc\b', opnd): out.add(('s', 'vcc'))
    if re.search(r'\bm0\b', opnd): out.add(('s', 'm0'))
    if re.search(r'\bexec\b', opnd): out.add(('s', 'exec'))
    return out

def split_ops(t):
    parts = t.split(None, 1)
    if len(parts) == 1: return parts[0], []
    return parts[0], [x.strip() for x in parts[1].split(',')]

def rw(t):
    mn, ops = split_ops(t)
    c = opclass(t)
    W, R, ex = set(), set(), {}
    if c == 'mfma':
        W = regs_of(ops[0]); ex['A'] = regs_of(ops[1]); ex['B'] = regs_of(ops[2]); ex['C'] = regs_of(ops[3])
        R = ex['A'] | ex['B'] | ex['C']
        ex['passes'] = 8 if '32x32x16' in mn else (4 if '16x16x32' in mn else 2)
    elif c == 'valu':
        if mn.startswith('v_cmp'):
            W = regs_of(ops[0]); R = set().union(*[regs_of(o) for o in ops[1:]])
        elif mn.startswith('v_permlane'):
            W = regs_of(ops[0]) | regs_of(ops[1]); R = set(W)
        elif mn.startswith('v_nop'):
            pass
        else:
            W = regs_of(ops[0]); R = set().union(*[regs_of(o) for o in ops[1:]]) if len(ops) > 1 else set()
            if mn.startswith(('v_fmac', 'v_dot2c', 'v_writelane')): R |= W
            if mn.startswith(('v_add_co', 'v_addc_co', 'v_sub_co')): W |= regs_of(ops[1])
    elif c == 'ds':
        if mn.startswith('ds_read') or mn.startswith('ds_bperm') or mn.startswith('ds_swiz'):
            W = regs_of(ops[0]); R = set().union(*[regs_of(o) for o in ops[1:]])
        else:
            R = set().union(*[regs_of(o) for o in ops])
    elif c == 'vm':
        if mn.startswith(('buffer_inv', 'buffer_wbl2')):
            pass
        elif '_load' in mn:
            if re.search(r'\blds\b', t) or '_lds_' in mn:
                R = set().union(*[regs_of(o) for o in ops]); R.add(('s', 'm0')); ex['dma'] = True
            else:
                W = regs_of(ops[0]); R = set().union(*[regs_of(o) for o in ops[1:]])
        else:
            R = set().union(*[regs_of(o) for o in ops])
            if 'store' in mn and ('x4' in mn or 'x3' in mn):
                ex['wide_data'] = regs_of(ops[0]) if mn.startswith('buffer') else regs_of(ops[1])
            if 'atomic' in mn and re.search(r'\bsc0\b', t): W = regs_of(ops[0])
    elif c in ('salu', 'smem'):
        if mn.startswith(('s_cmp', 's_cbranch', 's_branch', 's_waitcnt', 's_nop', 's_barrier', 's_sleep', 's_setprio', 's_endpgm', 's_bitcmp')):
            R = set().union(*[regs_of(o) for o in ops]) if ops and not mn.startswith(('s_waitcnt', 's_cbranch', 's_branch')) else set()
        else:
            W = regs_of(ops[0]); R = set().union(*[regs_of(o) for o in ops[1:]]) if len(ops) > 1 else set()
            if mn.startswith(('s_addk', 's_mulk')): R |= W
            if 'saveexec' in mn: W.add(('s', 'exec'))
    return mn, c, W, R, ex

TRANS = re.compile(r'v_(exp|rcp|rsq|sqrt|log|sin|cos)_')
def need_states(p, c):
    pm, pc, pW, pR, pex = p
    cm, cc, cW, cR, cex = c
    n = 0
    if pc == 'mfma':
        ps = pex['passes']
        big = {2: 5, 4: 8, 8: 12}[ps]; part = {2: 4, 4: 6, 8: 10}[ps]; war = {2: 1, 4: 3, 8: 7}[ps]
        if cc == 'mfma':
            if pW & (cex['A'] | cex['B']): n = max(n, big)
            if pW & cex['C']:
                if pW == cex['C'] and ps == cex['passes']: n = max(n, 2 if ps == 2 else 0)
                else: n = max(n, part)
            elif pW & cW and not (pW == cW and ps == cex['passes']): n = max(n, big)
        elif cc in ('valu', 'ds', 'vm'):
            if pW & (cR | cW): n = max(n, big)
            if pex['C'] & cW: n = max(n, war)
    if pc == 'valu':
        pWv = {r for r in pW if r[0] in 'va'}; pWs = {r for r in pW if r[0] == 's'}
        isdot = pm.startswith('v_dot')
        if cc == 'mfma' and pWv & cR: n = max(n, 3 if isdot else 2)
        if cc == 'valu':
            if TRANS.match(pm) and pWv & cR: n = max(n, 1)
            if cm.startswith(('v_readfirstlane', 'v_readlane')) and pWv & cR: n = max(n, 1)
            if cm.startswith('v_permlane') and pWv & cR: n = max(n, 2)
            if ('dpp' in cm or 'row_' in ' '.join(map(str, cex.get('txt', '')))) and pWv & cR: n = max(n, 2)
            if pWs & cR: n = max(n, 2)
            if isdot and pWv & (cR | cW) and not (cm == pm): n = max(n, 3)
        if isdot and cc in ('ds', 'vm') and pWv & cR: n = max(n, 3)
        if cc == 'vm' and pWs & cR: n = max(n, 5)
        if cc == 'salu' and pWs & cR: n = max(n, 1)
        if cc == 'salu' and cm.startswith('s_cbranch_vcc') and ('s', 'vcc') in pWs: n = max(n, 5)
    if pc == 'salu' and ('s', 'm0') in pW and cex.get('dma'): n = max(n, 1)
    if pc == 'vm' and 'wide_data' in pex and pex['wide_data'] & cW: n = max(n, 2 if cc == 'valu' else 1)
    return n

def states_of(t):
    m = re.match(r's_nop\s+(\d+)', t)
    return int(m.group(1)) + 1 if m else 1

def finalize(ops, verbose=False):
    out = []
    q = {'vm': [], 'lg': []}; done = {'vm': 0, 'lg': 0}
    pos = {}
    nwaits = 0
    for op in ops:
        if isinstance(op, str): op = Op(op)
        need = {}
        for tg in op.waits:
            if tg not in pos: raise Exception(f"wait on unknown tag {tg} at {op.text}")
            k, i = pos[tg]
            if i + 1 > done[k]: need[k] = max(need.get(k, 0), i + 1)
        if need:
            parts = []
            for k, upto in need.items():
                n = len(q[k]) - upto
                mx = 63 if k == 'vm' else 15
                n = min(n, mx)
                done[k] = len(q[k]) - n
                parts.append(f"{'vmcnt' if k == 'vm' else 'lgkmcnt'}({n})")
            out.append("s_waitcnt " + " ".join(parts)); nwaits += 1
        t = op.text
        if t:
            c = opclass(t)
            if op.raw: pass
            elif c == 'vm':
                q['vm'].append(op.tag)
                if op.tag: pos[op.tag] = ('vm', len(q['vm']) - 1)
            elif c == 'ds':
                q['lg'].append(op.tag)
                if op.tag: pos[op.tag] = ('lg', len(q['lg']) - 1)
            elif t.startswith('s_waitcnt'):
                m = re.search(r'vmcnt\((\d+)\)', t)
                if m: done['vm'] = max(done['vm'], len(q['vm']) - int(m.group(1)))
                m = re.search(r'lgkmcnt\((\d+)\)', t)
                if m: done['lg'] = max(done['lg'], len(q['lg']) - int(m.group(1)))
            out.append(t)
    res = []; hist = []
    nn = 0
    for t in out:
        if opclass(t) in ('label', 'other'):
            res.append(t); continue
        cur = rw(t)
        cur[4]['txt'] = t if ('row_' in t or 'quad_perm' in t) else ''
        dist = 0; pad = 0
        for p, st in reversed(hist[-24:]):
            req = need_states(p, cur)
            if ('row_' in t or 'quad_perm' in t) and p[1] == 'valu' and ({r for r in p[2] if r[0] == 'v'} & cur[3]): req = max(req, 2)
            if req > dist: pad = max(pad, req - dist)
            dist += st
            if dist > 20: break
        if pad:
            res.append(f"s_nop {pad - 1}"); hist.append((rw('s_nop 0'), pad)); nn += pad
        res.append(t); hist.append((cur, states_of(t)))
    if verbose: print(f"; waits {nwaits}, nop states {nn}, instrs {len(res)}")
    return res

class Sched:
    def __init__(self):
        self.out = []
        self.streams = []
    def emit(self, *ops):
        for o in ops:
            if isinstance(o, (list, tuple)): self.emit(*o)
            else: self.out.append(o if isinstance(o, Op) else Op(o))
    def add(self, name, ops, prio=0, after=None):
        ops = [o if isinstance(o, Op) else Op(o) for o in ops]
        for s in self.streams:
            if s['name'] == name:
                s['ops'].extend(ops); return
        self.streams.append(dict(name=name, ops=list(ops), prio=prio, after=after))
        self.streams.sort(key=lambda s: -s['prio'])
    def pending(self, name=None):
        return sum(sum(o.cost for o in s['ops']) for s in self.streams if name is None or s['name'] == name)
    def fill(self, budget):
        used = 0
        for s in self.streams:
            if s['after'] and any(x['ops'] for x in self.streams if x['name'] == s['after']): continue
            while s['ops'] and used + s['ops'][0].cost <= budget:
                o = s['ops'].pop(0); used += o.cost; self.out.append(o)
            if s['ops'] and used >= budget: break
        return used
    def flush(self, name=None):
        for s in self.streams:
            if name is None or s['name'] == name:
                self.out.extend(s['ops']); s['ops'] = []
```

```python
import sys, struct
from asmfw import *

NAME = 'parallel_sum__linear_attn_block__swiglu_ffn__prompt'
def f2u(x): return struct.unpack('<I', struct.pack('<f', x))[0]
LOG2E = 1.4426950408889634; LN2 = 0.6931471805599453

WS_A   = 0
WS_KVP = 10 << 20
WS_CNT = 12 << 20
WS_TS  = 16 << 20
WS_SIZE = 1 << 28
BIG = 0x40000000
MISC = 131072

sX, sWF, sWQ, sWS, sDBG, sWD, sWO, sOUT = 24, 28, 32, 36, 40, 44, 48, 52
sWave, sRt, sP, sType, sM0, sStrip = 56, 57, 58, 59, 60, 61
sOff = 62
sF1, sF2, sF3 = 63, 64, 65
sA1, sA2, sA3 = 66, 67, 68
sDelta, sLn2, sEps6 = 69, 70, 71
sT0, sT1, sT2, sT3 = 72, 73, 74, 75
sKvp, sCntKv, sCntH, sCntW = 76, 77, 78, 79
sMaskHi = 80
sR2, sC2 = 82, 83
sB0, sB1, sAl0, sAl1 = 84, 85, 86, 87
sRes = 88
sTS = 90
sTSb = 92
sSpin = 93
def srd(b): return f"s[{b}:{b+3}]"

vTid, vLane16 = 0, 1
vDF = 2
vDQ = 6
vDH = 10
vRF = 14
vRQ = 18
vRH = 22
vC1, vVar = 24, 25
vSig, vInit = 26, 27
vId = 28
vOne = 30
vPoll = 31
vNm = 32
vT = 36
vAcc = 64
vX = 128
aXC = 0
aW = 128
def blk(b): return vAcc + 16 * b
def vr(a, n): return f"v[{a}:{a+n-1}]"
def ar(a, n): return f"a[{a}:{a+n-1}]"

class Cfg:
    la_x = 3
    la = 4
    budget = 5
    kv_budget = 9
    stamps = False
    codepf = True

def stamp(S, cfg, idx):
    if not cfg.stamps: return
    S.emit(Op(f"s_memtime s[{sTS}:{sTS+1}]"), Op("s_waitcnt lgkmcnt(0)"),
           Op(f"v_mov_b32 v{vPoll}, s{sTS}"),
           Op(f"buffer_store_dword v{vPoll}, off, {srd(sWS)}, s{sTSb} offset:{4*idx}"))

def prologue(cfg):
    L = []; A = L.append
    A("s_cmp_ge_u32 s2, 256"); A("s_cbranch_scc1 L_end")
    A("s_load_dwordx16 s[4:19], s[0:1], 0"); A("s_load_dwordx4 s[20:23], s[0:1], 64")
    if cfg.stamps: A("s_memtime s[94:95]")
    if cfg.codepf:
        A("s_getpc_b64 s[96:97]")
        A("L_pc:")
        A("s_lshr_b32 s3, s2, 3"); A("s_and_b32 s3, s3, 7"); A("s_lshl_b32 s3, s3, 13")
        A(f"v_and_b32 v{vT}, 63, v0"); A(f"v_lshlrev_b32 v{vT}, 7, v{vT}"); A(f"v_add_u32 v{vT}, s3, v{vT}")
        A(f"v_min_u32 v{vT}, L_end-L_pc, v{vT}")
        A(f"v_cmp_gt_u32 vcc, 64, v0"); A("s_and_saveexec_b64 s[98:99], vcc"); A("s_cbranch_execz L_nopf")
        A(Op(f"global_load_dword v63, v{vT}, s[96:97]", raw=True))
        A("L_nopf:"); A("s_mov_b64 exec, s[98:99]")
    t = vT
    ln, i7, i3, b4 = t + 1, t + 2, t + 3, t + 4
    A(f"v_lshrrev_b32 v{t}, 6, v0"); A(f"v_and_b32 v{ln}, 63, v0"); A(f"v_readfirstlane_b32 s{sWave}, v{t}")
    A(f"v_lshlrev_b32 v{vLane16}, 4, v{ln}")
    A(f"s_and_b32 s{sT0}, s2, 7"); A(f"s_lshr_b32 s{sT1}, s2, 3")
    A(f"s_and_b32 s{sRt}, s{sT0}, 1"); A(f"s_lshl_b32 s{sRt}, s{sRt}, 3"); A(f"s_and_b32 s{sT2}, s{sT1}, 7"); A(f"s_add_u32 s{sRt}, s{sRt}, s{sT2}")
    A(f"s_lshr_b32 s{sT2}, s{sT1}, 3")
    A(f"s_and_b32 s{sType}, s{sT2}, 1")
    A(f"s_lshr_b32 s{sT2}, s{sT2}, 1")
    A(f"s_and_b32 s{sP}, s{sT0}, 6"); A(f"s_add_u32 s{sP}, s{sP}, s{sT2}")
    A(f"s_lshr_b32 s{sStrip}, s{sWave}, 1")
    A(f"s_lshl_b32 s{sM0}, s{sStrip}, 16"); A(f"s_and_b32 s{sT3}, s{sWave}, 1"); A(f"s_lshl_b32 s{sT0}, s{sT3}, 12"); A(f"s_add_u32 s{sM0}, s{sM0}, s{sT0}")
    A(f"v_and_b32 v{i7}, 7, v{ln}"); A(f"v_lshrrev_b32 v{i3}, 3, v{ln}"); A(f"v_lshrrev_b32 v{b4}, 4, v{ln}")
    A(f"v_xor_b32 v{t+5}, v{i7}, v{b4}"); A(f"v_lshlrev_b32 v{t+5}, 4, v{t+5}"); A(f"v_lshl_add_u32 v{vDH}, v{i3}, 10, v{t+5}")
    A(f"v_xor_b32 v{vDH+1}, 64, v{vDH}"); A(f"v_add_u32 v{vDH+1}, {7*1024}, v{vDH+1}")
    A(f"v_add_u32 v{vDH+2}, {14*1024}, v{vDH}"); A(f"v_add_u32 v{vDH+3}, {14*1024}, v{vDH+1}")
    A(f"s_lshl_b32 s{sOff}, s{sRt}, 2"); A(f"s_add_u32 s{sOff}, s{sOff}, s{sWave}")
    A(f"s_mul_i32 s{sA1}, s{sOff}, {144*1024}")
    A(f"s_lshl_b32 s{sOff}, s{sOff}, 15")
    A("s_waitcnt lgkmcnt(0)")
    A(f"s_mov_b32 s{sX}, s4"); A(f"s_mov_b32 s{sX+1}, s5"); A(f"s_mov_b32 s{sX+2}, {2048*1024}"); A(f"s_mov_b32 s{sX+3}, 0x20000")
    return L

def setup2(cfg):
    L = []; A = L.append
    t = vT
    ln, i7, i3, b4 = t + 1, t + 2, t + 3, t + 4
    def mk(b, lo, n):
        A(f"s_mov_b32 s{b}, s{lo}"); A(f"s_mov_b32 s{b+1}, s{lo+1}"); A(f"s_mov_b32 s{b+2}, {n}"); A(f"s_mov_b32 s{b+3}, 0x20000")
    mk(sWS, 22, WS_SIZE); mk(sDBG, 20, 256); mk(sWQ, 6, 512 * 3072); mk(sWD, 16, 1792 * 1024); mk(sWO, 8, 512 * 1024); mk(sOUT, 18, 2048 * 1024)
    A(f"s_cmp_eq_u32 s{sStrip}, 0"); A(f"s_cselect_b32 s{sWF}, s12, s14"); A(f"s_cselect_b32 s{sWF+1}, s13, s15")
    A(f"s_mov_b32 s{sWF+2}, {512*3584}"); A(f"s_mov_b32 s{sWF+3}, 0x20000")
    if cfg.stamps:
        A(f"s_lshl_b32 s{sTSb}, s2, 2"); A(f"s_add_u32 s{sTSb}, s{sTSb}, s{sWave}"); A(f"s_lshl_b32 s{sTSb}, s{sTSb}, 7"); A(f"s_add_u32 s{sTSb}, s{sTSb}, {WS_TS}")
        A(f"v_mov_b32 v{vPoll}, s94"); A(f"buffer_store_dword v{vPoll}, off, {srd(sWS)}, s{sTSb}")
    A(f"v_lshlrev_b32 v{vInit}, 8, v0"); A(f"v_add_u32 v{vInit}, {WS_CNT}, v{vInit}")
    A(f"s_cmp_eq_u32 s2, 0"); A(f"s_cselect_b32 s{sT0}, 0, {BIG}")
    A(f"v_or_b32 v{vInit}, s{sT0}, v{vInit}")
    A(f"v_mov_b32 v{t+5}, 0")
    A(Op(f"buffer_store_dword v{t+5}, v{vInit}, {srd(sWS)}, 0 offen sc1", tag='init'))
    A(f"v_mov_b32 v{vOne}, 1")
    A(f"v_cmp_eq_u32 vcc, 0, v0"); A(f"v_mov_b32 v{t+6}, {BIG}"); A(f"v_cndmask_b32 v{vSig}, v{t+6}, v{t+5}, vcc")
    A(f"v_or_b32 v{vInit}, s{sT0}, v{vSig}")
    b1, pos, sub, row = t + 5, t + 6, t + 7, t + 8
    A(f"v_and_b32 v{b1}, 1, v{b4}"); A(f"v_lshrrev_b32 v{pos}, 1, v{i7}"); A(f"v_and_b32 v{sub}, 1, v{ln}"); A(f"v_lshlrev_b32 v{sub}, 4, v{sub}")
    A(f"s_and_b32 s{sT3}, s{sWave}, 1"); A(f"s_lshl_b32 s{sT0}, s{sT3}, 5"); A(f"v_add_u32 v{row}, s{sT0}, v{i3}")
    A(f"s_lshl_b32 s{sT1}, s{sStrip}, 1"); A(f"v_or_b32 v{t+9}, s{sT1}, v{b1}"); A(f"v_xor_b32 v{t+9}, v{pos}, v{t+9}")
    A(f"v_lshl_add_u32 v{t+9}, v{t+9}, 5, v{sub}"); A(f"v_mul_u32_u24 v{vDF}, 3584, v{row}"); A(f"v_add_u32 v{vDF}, v{vDF}, v{t+9}")
    for j in range(1, 4): A(f"v_add_u32 v{vDF+j}, {j*(8*3584-1024)}, v{vDF}")
    A(f"v_lshlrev_b32 v{t+9}, 1, v{b1}"); A(f"v_xor_b32 v{t+9}, v{pos}, v{t+9}"); A(f"v_lshl_add_u32 v{t+9}, v{t+9}, 5, v{sub}")
    A(f"v_mul_u32_u24 v{vDQ}, 3072, v{row}"); A(f"v_add_u32 v{vDQ}, v{vDQ}, v{t+9}")
    for j in range(1, 4): A(f"v_add_u32 v{vDQ+j}, {j*(8*3072-1024)}, v{vDQ}")
    hf, r4, c4, rb = t + 10, t + 11, t + 12, t + 13
    A(f"v_lshrrev_b32 v{hf}, 5, v{ln}"); A(f"v_bfe_u32 v{r4}, v{ln}, 2, 2"); A(f"v_and_b32 v{c4}, 3, v{ln}"); A(f"v_lshlrev_b32 v{c4}, 3, v{c4}")
    A(f"v_lshl_add_u32 v{row}, v{hf}, 3, v{r4}")
    A(f"v_lshrrev_b32 v{rb}, 1, v{r4}")
    A(f"v_lshl_or_b32 v{t+9}, v{b1}, 1, v{rb}"); A(f"v_lshl_add_u32 v{t+9}, v{t+9}, 5, v{c4}"); A(f"v_lshl_add_u32 v{t+9}, v{row}, 7, v{t+9}")
    A(f"v_lshl_add_u32 v{vRF}, v{b1}, 16, v{t+9}")
    for u in range(1, 4): A(f"v_xor_b32 v{vRF+u}, {32*u}, v{vRF}")
    A(f"v_lshl_or_b32 v{t+9}, v{rb}, 1, v{b1}"); A(f"v_lshl_add_u32 v{t+9}, v{t+9}, 5, v{c4}"); A(f"v_lshl_add_u32 v{vRQ}, v{row}, 7, v{t+9}")
    A(f"v_xor_b32 v{vRQ+1}, 64, v{vRQ}"); A(f"v_add_u32 v{vRQ+2}, 65536, v{vRQ}"); A(f"v_add_u32 v{vRQ+3}, 65536, v{vRQ+1}")
    A(f"v_lshl_add_u32 v{t+9}, v{b1}, 5, v{c4}"); A(f"v_lshl_add_u32 v{t+9}, v{row}, 6, v{t+9}"); A(f"v_lshl_add_u32 v{vRH}, v{b1}, 16, v{t+9}")
    A(f"v_xor_b32 v{vRH+1}, 32, v{vRH}")
    A(f"v_cmp_eq_u32 s[{sMaskHi}:{sMaskHi+1}], 1, v{b1}")
    A(f"v_mov_b32 v{t+9}, 0x3f80"); A(f"v_lshlrev_b32 v{t+9}, v{sub}, v{t+9}")
    A(f"v_and_b32 v{t+14}, 2, v{ln}"); A(f"v_cmp_eq_u32 vcc, 0, v{t+14}")
    A(f"v_mov_b32 v{t+14}, 0")
    A(f"v_cndmask_b32 v{vId}, v{t+14}, v{t+9}, vcc"); A(f"v_cndmask_b32 v{vId+1}, v{t+9}, v{t+14}, vcc")
    r = t + 9
    A(f"v_and_b32 v{r}, 31, v{ln}"); A(f"v_bfe_u32 v{t+14}, v{ln}, 1, 3"); A(f"v_xor_b32 v{t+14}, v{t+14}, v{hf}")
    A(f"v_lshlrev_b32 v{t+14}, 4, v{t+14}"); A(f"v_lshl_add_u32 v{t+14}, v{r}, 7, v{t+14}"); A(f"v_add_u32 v{t+16}, s{sM0}, v{t+14}")
    for k in range(1, 4): A(f"v_xor_b32 v{t+16+k}, {32*k}, v{t+16}")
    for k in range(4): A(f"v_mov_b32 v{t+20+k}, 0")
    A(f"v_mov_b32 v{t+24}, 0x3f803f80")
    A(f"s_mov_b32 s{sSpin}, 200000")
    A(f"s_mov_b32 s{sDelta}, {hex(f2u(1e-6/LN2))}"); A(f"s_mov_b32 s{sLn2}, {hex(f2u(LN2))}"); A(f"s_mov_b32 s{sEps6}, {hex(f2u(1e-6))}")
    A(f"s_lshl_b32 s{sT0}, s{sP}, 2"); A(f"s_add_u32 s{sT0}, s{sT0}, s{sWave}"); A(f"s_mul_i32 s{sKvp}, s{sT0}, {16*1280}"); A(f"s_add_u32 s{sKvp}, s{sKvp}, {WS_KVP}")
    A(f"s_lshl_b32 s{sCntKv}, s{sP}, 8"); A(f"s_add_u32 s{sCntKv}, s{sCntKv}, {WS_CNT + 192*256}")
    A(f"s_lshr_b32 s{sT0}, s{sP}, 1"); A(f"s_lshl_b32 s{sT1}, s{sRt}, 2"); A(f"s_add_u32 s{sT0}, s{sT0}, s{sT1}")
    A(f"s_lshl_b32 s{sCntH}, s{sT0}, 8"); A(f"s_add_u32 s{sCntH}, s{sCntH}, {WS_CNT}")
    A(f"s_and_b32 s{sT0}, s2, 7"); A(f"s_lshl_b32 s{sT0}, s{sT0}, 2"); A(f"s_bfe_u32 s{sT1}, s2, 0x20003"); A(f"s_add_u32 s{sR2}, s{sT0}, s{sT1}")
    A(f"s_lshr_b32 s{sC2}, s2, 5")
    A(f"s_lshr_b32 s{sT0}, s{sR2}, 1"); A(f"s_lshl_b32 s{sT0}, s{sT0}, 2"); A(f"s_add_u32 s{sT0}, s{sT0}, s{sWave}")
    A(f"s_lshl_b32 s{sCntW}, s{sT0}, 8"); A(f"s_add_u32 s{sCntW}, s{sCntW}, {WS_CNT}")
    return L

def type_setup(typ):
    L = []; A = L.append
    A(f"s_mul_i32 s{sT0}, s{sP}, 14"); A(f"s_and_b32 s{sT1}, s{sP}, 1"); A(f"s_cmp_eq_u32 s{sT1}, 0")
    if typ == 'A':
        A(f"s_cselect_b32 s{sT1}, 0, 6"); A(f"s_add_u32 s{sT0}, s{sT0}, s{sT1}")
        A(f"s_lshl_b32 s{sF1}, s{sT0}, 5"); A(f"s_add_u32 s{sF3}, s{sF1}, 128")
        A(f"s_mul_i32 s{sF2}, s{sStrip}, {64*3072}"); A(f"s_lshl_b32 s{sT1}, s{sP}, 7"); A(f"s_add_u32 s{sF2}, s{sF2}, s{sT1}")
        A(f"s_lshl_b32 s{sT1}, s{sP}, 12"); A(f"s_add_u32 s{sA2}, s{sA1}, s{sT1}"); A(f"s_add_u32 s{sA2}, s{sA2}, {112*1024}")
        A(f"s_lshl_b32 s{sT0}, s{sT0}, 10"); A(f"s_add_u32 s{sA1}, s{sA1}, s{sT0}"); A(f"s_add_u32 s{sA3}, s{sA1}, 4096")
    else:
        A(f"s_cselect_b32 s{sT1}, 12, 0"); A(f"s_cselect_b32 s{sT2}, 8, 2")
        A(f"s_add_u32 s{sT1}, s{sT0}, s{sT1}"); A(f"s_add_u32 s{sT2}, s{sT0}, s{sT2}")
        A(f"s_lshl_b32 s{sF2}, s{sT1}, 5"); A(f"s_lshl_b32 s{sF3}, s{sT2}, 5")
        A(f"s_lshl_b32 s{sT1}, s{sT1}, 10"); A(f"s_add_u32 s{sA2}, s{sA1}, s{sT1}")
        A(f"s_lshl_b32 s{sT2}, s{sT2}, 10"); A(f"s_add_u32 s{sA3}, s{sA1}, s{sT2}")
        A(f"s_lshl_b32 s{sF1}, s{sStrip}, 10"); A(f"s_lshl_b32 s{sT1}, s{sP}, 7"); A(f"s_add_u32 s{sF1}, s{sF1}, s{sT1}"); A(f"s_add_u32 s{sF1}, s{sF1}, 1024")
        A(f"s_mul_i32 s{sT0}, s{sRt}, 1280"); A(f"s_add_u32 s{sKvp}, s{sKvp}, s{sT0}")
    return L

def dma_stage(slot, voff, srdb, tag, first=None, step=None, waits=()):
    L = []
    L.append(Op(f"s_add_u32 m0, s{sM0}, {slot*8192}" if slot else f"s_mov_b32 m0, s{sM0}"))
    if first is not None: L.append(Op(f"s_mov_b32 s{sOff}, s{first}"))
    elif step: L.append(Op(f"s_add_u32 s{sOff}, s{sOff}, {step}"))
    for j in range(4):
        L.append(Op(f"buffer_load_dwordx4 v{voff+j}, {srd(srdb)}, s{sOff} offen offset:{j*1024} lds", tag=tag if j == 3 else None, waits=waits if j == 0 else ()))
    return L

def w_dma(typ, n, waits=()):
    kinds = {'A': ['F4', 'Q2', 'F4'], 'B': ['KV', 'F2', 'F4']}[typ]
    ps, i = (0, n) if n < 8 else ((1, n - 8) if n < 12 else (2, n - 12))
    k = kinds[ps]
    voff, sr, step = {'F4': (vDF, sWF, 64 * 3584), 'KV': (vDQ, sWQ, 64 * 3072), 'Q2': (vDQ, sWQ, 128 * 3072), 'F2': (vDH, sWF, 128 * 3584)}[k]
    return dma_stage(n % 8, voff, sr, f"W{n}", first=[sF1, sF2, sF3][ps] if i == 0 else None, step=step, waits=waits)

def frag_info(typ, g):
    n, m = divmod(g, 16)
    kinds = {'A': ['F4', 'Q2', 'F4'], 'B': ['KV', 'F2', 'F4']}[typ]
    ps, i = (0, n) if n < 8 else ((1, n - 8) if n < 12 else (2, n - 12))
    k = kinds[ps]; sl = (n % 8) * 8192
    if k == 'F4': t, u = divmod(m, 4); return ps, k, 4 * i + t, u, vRF + u, sl + t * 2048, 512
    if k == 'KV': t, u = divmod(m, 4); return ps, k, 4 * i + t, u, vRQ + u, sl + t * 2048, 512
    if k == 'Q2': t, u = divmod(m, 2); return ps, k, 8 * i + t, u, vRQ + u + 2 * (t >> 2), sl + (t & 3) * 2048, 512
    if k == 'F2': t, u = divmod(m, 2); return ps, k, 8 * i + t, u, vRH + u, sl + t * 1024, 256

def frag_reads(typ, g):
    ps, k, kk, u, a, imm, st = frag_info(typ, g)
    r = aW + 4 * (g % 8)
    return [Op(f"ds_read_b64_tr_b16 {ar(r,2)}, v{a} offset:{imm}"), Op(f"ds_read_b64_tr_b16 {ar(r+2,2)}, v{a} offset:{imm+st}", tag=f"f{g}")]

ACCB = {'A': [[0, 1, 2, 3], [4, 5], [6, 7, 0, 1]], 'B': [[0, 1, 2, 3], [4, 5], [6, 7, 0, 2]]}

def silu_epi(b, sA, u, tag):
    g = blk(b); L = []
    for h in (0, 4):
        R = range(h, h + 4)
        for r in R: L.append(f"v_mul_f32 v{g+8+r}, v{g+r}, v{g+8+r}")
        for r in R: L.append(f"v_mul_f32 v{g+r}, v{vC1}, v{g+r}")
        for r in R: L.append(f"v_exp_f32 v{g+r}, v{g+r}")
        for r in R: L.append(f"v_fma_f32 v{g+r}, v{g+r}, v{vVar}, v{vVar}")
        for r in R: L.append(f"v_rcp_f32 v{g+r}, v{g+r}")
        for r in R: L.append(f"v_mul_f32 v{g+8+r}, v{g+r}, v{g+8+r}")
    for j in range(4): L.append(f"v_cvt_pk_bf16_f32 v{g+j}, v{g+8+2*j}, v{g+9+2*j}")
    L.append(Op(f"buffer_store_dwordx4 {vr(g,4)}, v{vLane16}, {srd(sWS)}, s{sA} offen offset:{u*1024} sc1", tag=tag))
    return L

def phi_epi(b, scale, dst, tmp):
    g = blk(b); L = []
    for h in range(0, 16, 4):
        R = range(h, h + 4)
        for r in R: L.append(f"v_fma_f32 v{g+r}, v{g+r}, {scale(r)}, s{sDelta}")
        for r in R: L.append(f"v_exp_f32 v{tmp+r-h}, v{g+r} clamp")
        for r in R: L.append(f"v_max_f32 v{g+r}, s{sDelta}, v{g+r}")
        for r in R: L.append(f"v_fmac_f32 v{tmp+r-h}, s{sLn2}, v{g+r}")
        for j in range(2): L.append(f"v_cvt_pk_bf16_f32 v{dst+h//2+j}, v{tmp+2*j}, v{tmp+2*j+1}")
    return L

def poll_issue(sCnt, srdb, tag):
    return Op(f"buffer_load_dword v{vPoll}, off, {srd(srdb)}, {sCnt} sc1", tag=tag)

SLOW = []
def poll_check(sCnt, srdb, tag, target, name):
    L = [Op(f"v_readfirstlane_b32 s{sT0}, v{vPoll}", waits=tag), f"s_cmp_ge_u32 s{sT0}, {target}", f"s_cbranch_scc0 L_slow_{name}", f"L_back_{name}:"]
    SLOW.extend([f"L_slow_{name}:", f"s_sub_u32 s{sSpin}, s{sSpin}, 1", f"s_cbranch_scc1 L_back_{name}", "s_sleep 2", f"buffer_load_dword v{vPoll}, off, {srd(srdb)}, {sCnt} sc1", "s_waitcnt vmcnt(0)",
                 f"v_readfirstlane_b32 s{sT0}, v{vPoll}", "s_nop 0", f"s_cmp_ge_u32 s{sT0}, {target}", f"s_cbranch_scc0 L_slow_{name}", f"s_branch L_back_{name}"])
    L[0].cost = 3
    return L

def signal(sCnt):
    return Op(f"buffer_atomic_add v{vOne}, v{vSig}, {srd(sWS)}, {sCnt} offen sc1")

def center(kk):
    x = vX + 4 * kk; tmp = vT + 8 * (kk % 2)
    m4 = [f"v_mfma_f32_4x4x4_16b_bf16 {vr(tmp,4)}, {vr(vId,2)}, {vr(x,2)}, {vr(vNm,4)}",
          f"v_mfma_f32_4x4x4_16b_bf16 {vr(tmp+4,4)}, {vr(vId,2)}, {vr(x+2,2)}, {vr(vNm,4)}"]
    cv = [f"v_cvt_pk_bf16_f32 v{x+j}, v{tmp+2*j}, v{tmp+2*j+1}" for j in range(4)]
    aw = [f"v_accvgpr_write_b32 a{aXC+4*kk+j}, v{x+j}" for j in range(4)]
    return m4, cv, aw

def phase1(typ, cfg):
    S = Sched(); E = S.emit
    t = vT
    E(type_setup(typ))
    def xread(c): return [Op(f"ds_read_b128 {vr(vX+16*c+4*k,4)}, v{t+16+k} offset:{c*8192}", tag=f"xr{c}", waits=f"X{c}" if k == 0 else ()) for k in range(4)]
    def xstat(c):
        L = []
        for d in range(16):
            r = vX + 16 * c + d
            L.append(Op(f"v_dot2c_f32_bf16 v{t+20+d%2}, v{r}, v{t+24}", waits=f"xr{c}" if d == 0 else ()))
            L.append(f"v_dot2c_f32_bf16 v{t+22+d%2}, v{r}, v{r}")
        return L
    nW = 0
    for c in range(8):
        E(xread(c))
        nx = c + cfg.la_x
        if nx < 8: E(dma_stage(nx, vDH, sX, f"X{nx}", step=128))
        else: E(w_dma(typ, nW, waits=f"xr{nW}")); nW += 1
        E(xstat(c))
    stamp(S, cfg, 1)
    s1, s2, a, b = t + 20, t + 22, t + 25, t + 26
    E(f"v_add_f32 v{s1}, v{s1}, v{s1+1}", f"v_add_f32 v{s2}, v{s2}, v{s2+1}",
      f"v_mov_b32 v{a}, v{s1}", f"v_mov_b32 v{b}, v{s2}",
      f"v_permlane32_swap_b32 v{s1}, v{a}", f"v_permlane32_swap_b32 v{s2}, v{b}",
      f"v_add_f32 v{s1}, v{s1}, v{a}", f"v_add_f32 v{s2}, v{s2}, v{b}",
      f"v_mul_f32 v{s1}, {hex(f2u(-1/512))}, v{s1}",
      f"v_cvt_pk_bf16_f32 v{a}, v{s1}, v{s1}", f"v_and_b32 v{vNm}, 0xffff0000, v{a}",
      f"v_mov_b32 v{vNm+1}, v{vNm}", f"v_mov_b32 v{vNm+2}, v{vNm}", f"v_mov_b32 v{vNm+3}, v{vNm}")
    for kk in range(2): E(center(kk)[0])
    E(Op("s_barrier", waits=["W0", "init"]))
    E(Op(f"buffer_store_dword v{vOne}, v{vInit}, {srd(sDBG)}, 0 offen sc1"))
    for g in range(6): E(frag_reads(typ, g))
    E(center(0)[1])
    rest = [f"v_mul_f32 v{s2}, {hex(f2u(1/512))}, v{s2}", f"v_fma_f32 v{s2}, -v{s1}, v{s1}, v{s2}", f"v_max_f32 v{s2}, 0, v{s2}",
            f"v_cvt_pk_bf16_f32 v{a}, v{s2}, v{s2}", f"v_and_b32 v{a}, 0xffff0000, v{a}", f"v_add_f32 v{a}, {hex(f2u(1e-5))}, v{a}",
            f"v_cvt_pk_bf16_f32 v{a}, v{a}, v{a}", f"v_and_b32 v{a}, 0xffff0000, v{a}", f"v_sqrt_f32 v{a}, v{a}",
            f"v_cvt_pk_bf16_f32 v{a}, v{a}, v{a}", f"v_and_b32 v{a}, 0xffff0000, v{a}",
            f"v_mul_f32 v{vVar}, v{a}, v{a}", f"v_rcp_f32 v{a}, v{a}", f"v_mul_f32 v{vC1}, {hex(f2u(-LOG2E))}, v{a}"]
    E(rest)
    vCr = 192
    if typ == 'B':
        ln = t + 16
        E(f"v_and_b32 v{ln}, 63, v0", f"s_and_b32 s{sT0}, s{sWave}, 1", f"s_lshl_b32 s{sT0}, s{sT0}, 6",
          f"v_lshrrev_b32 v{ln+1}, 2, v{ln}", f"v_add_u32 v{ln+1}, s{sT0}, v{ln+1}", f"v_mul_u32_u24 v{vDH}, 3584, v{ln+1}",
          f"v_and_b32 v{ln+1}, 3, v{ln}", f"s_lshl_b32 s{sT0}, s{sStrip}, 1", f"v_xor_b32 v{ln+1}, s{sT0}, v{ln+1}",
          f"v_lshl_add_u32 v{vDH}, v{ln+1}, 4, v{vDH}")
        for j in range(1, 4): E(f"v_add_u32 v{vDH+j}, {j*(16*3584-1024)}, v{vDH}")
        E(f"s_lshl_b32 s{sT0}, s{sWave}, 13", f"s_add_u32 s{sT0}, s{sT0}, {MISC}",
          f"v_and_b32 v{ln+1}, 31, v{ln}", f"v_lshl_add_u32 v{ln+1}, v{ln+1}, 2, s{sT0}",
          f"v_sub_f32 v{a}, 0, v{vC1}", f"ds_write_b32 v{ln+1}, v{a}",
          f"v_lshrrev_b32 v{ln+2}, 5, v{ln}", f"v_lshl_add_u32 v{ln+2}, v{ln+2}, 4, s{sT0}",
          f"v_add_u32 v{ln}, s{sT0}, v{vLane16}",
          f"s_lshl_b32 s{sT0}, s{sWave}, 11", f"s_add_u32 s{sT0}, s{sT0}, {MISC}", f"v_add_u32 v{ln+1}, s{sT0}, v{vLane16}")
    else:
        ln = t + 16
        E(f"s_lshl_b32 s{sT0}, s{sWave}, 10", f"s_add_u32 s{sT0}, s{sT0}, {MISC}", f"v_add_u32 v{ln}, s{sT0}, v{vLane16}",
          f"v_add_u32 v{ln+1}, {MISC}, v{vLane16}")
    kvo = t + 19
    E(f"v_and_b32 v{a}, 15, v0", f"v_bfe_u32 v{b}, v0, 5, 1", f"v_lshl_add_u32 v{a}, v{b}, 4, v{a}", f"v_lshlrev_b32 v{a}, 4, v{a}",
      f"v_lshl_add_u32 v{b}, v{b}, 4, 0", f"v_add_u32 v{b}, 512, v{b}",
      f"v_bfe_u32 v{kvo}, v0, 4, 1", f"v_bfe_u32 v{s1}, v0, 6, 1", f"v_cmp_eq_u32 vcc, v{kvo}, v{s1}", f"v_cndmask_b32 v{kvo}, v{b}, v{a}, vcc")
    tmp = t + 20

    state = {'kv': 0}
    NG = 320
    for g in range(NG):
        n, m = divmod(g, 16)
        ps, kind, kk, u, _, _, _ = frag_info(typ, g)
        b_ = ACCB[typ][ps][u]
        if g == 128:
            S.flush('aw')
            if typ == 'A':
                S.add('epi', ["s_nop 0"] + silu_epi(0, sA1, 0, 'h10') + silu_epi(1, sA1, 1, 'h11'), prio=2)
                S.add('epi2', silu_epi(2, sA1, 2, 'h12') + silu_epi(3, sA1, 3, 'h13'), prio=1)
            else:
                ln = t + 16
                L = [Op(f"ds_read_b128 {vr(vCr+4*q,4)}, v{ln+2} offset:{32*q}", tag='cr') for q in range(4)]
                def kvpair(pr):
                    kb, vb = blk(pr), blk(2 + pr); pk, pv = 208, 216
                    L = phi_epi(pr, lambda r: f"v{vCr+r}", pk, tmp)
                    L[0] = Op(L[0], waits='cr')
                    for r in range(16): L.append(f"v_mul_f32 v{vb+r}, v{vCr+r}, v{vb+r}")
                    for j in range(8): L.append(f"v_cvt_pk_bf16_f32 v{pv+j}, v{vb+2*j}, v{vb+2*j+1}")
                    ones = 224
                    if pr == 0:
                        for j in range(4): L.append(f"v_mov_b32 v{ones+j}, 0x3f803f80")
                    L.append(Op(f"v_mfma_f32_32x32x16_bf16 {vr(kb,16)}, {vr(pk,4)}, {vr(pv,4)}, 0", cost=3))
                    L.append(Op(f"v_mfma_f32_32x32x16_bf16 {vr(vb,16)}, {vr(pk,4)}, {vr(ones,4)}, 0", cost=3))
                    L.append(Op(f"v_mfma_f32_32x32x16_bf16 {vr(kb,16)}, {vr(pk+4,4)}, {vr(pv+4,4)}, {vr(kb,16)}", cost=3))
                    L.append(Op(f"v_mfma_f32_32x32x16_bf16 {vr(vb,16)}, {vr(pk+4,4)}, {vr(ones,4)}, {vr(vb,16)}", cost=3))
                    L.append(Op("", cost=3)); L.append(Op("", cost=3)); L.append(Op("", cost=3))
                    for r in range(8): L.append(f"v_cndmask_b32 v{kb+r}, v{kb+r}, v{vb+r}, s[{sMaskHi}:{sMaskHi+1}]")
                    for r in range(8, 16): L.append(f"v_cndmask_b32 v{kb+r}, v{vb+r}, v{kb+r}, s[{sMaskHi}:{sMaskHi+1}]")
                    for q in range(4): L.append(Op(f"ds_write_b128 v{ln}, {vr(kb+4*q,4)} offset:{pr*4096+q*1024}", tag=f'kvw{pr}'))
                    return L
                S.add('epi', L + kvpair(0), prio=2)
                S.add('epi2', kvpair(1), prio=1, after='epi')
                state['kv'] = 1
        if g == 192:
            S.flush('epi')
            if typ == 'B': E(Op("", waits='kvw0'))
            if typ == 'A':
                S.add('epi3', phi_epi(4, lambda r: f"-v{vC1}", 192, tmp) + phi_epi(5, lambda r: f"-v{vC1}", 200, tmp), prio=0)
            else:
                S.add('epi3', silu_epi(4, sA2, 0, 'h20') + silu_epi(5, sA2, 1, 'h21'), prio=0)
        used = 0
        xop = vr(vX + 4 * kk, 4) if ps == 0 else ar(aXC + 4 * kk, 4)
        wop = ar(aW + 4 * (g % 8), 4)
        cin = "0" if kk == 0 else vr(blk(b_), 16)
        ops = (xop, wop) if kind == 'KV' else (wop, xop)
        w = [f"f{g+3}"] if g % 4 == 0 else []
        if w: used += 1
        E(Op(f"v_mfma_f32_32x32x16_bf16 {vr(blk(b_),16)}, {ops[0]}, {ops[1]}, {cin}", waits=w))
        if m == 10 and n + 1 < 20:
            w = [f"W{n+1}"]
            post = []
            if typ == 'B':
                if state['kv'] == 1 and S.pending('epi') == 0 and S.pending('epi2') == 0:
                    w.append('kvw1'); state['kv'] = 2
                    ln = t + 16; acc = 192
                    L = []
                    for src in range(4):
                        for rg in range(2): L.append(Op(f"ds_read_b128 {vr(acc+8*src+4*rg,4)}, v{ln+1} offset:{src*8192+rg*1024}", tag=f'kr{src}'))
                    for src in range(1, 4):
                        for r in range(8): L.append(Op(f"v_add_f32 v{acc+r}, v{acc+r}, v{acc+8*src+r}", waits=f'kr{src}' if r == 0 else ()))
                    for rg in range(2): L.append(Op(f"buffer_store_dwordx4 {vr(acc+4*rg,4)}, v{kvo}, {srd(sWS)}, s{sKvp} offen offset:{rg*640} sc1", tag='kvst'))
                    S.add('kvr', L, prio=3); state['kvn'] = n
                elif state['kv'] == 2 and S.pending('kvr') == 0 and n >= state['kvn'] + 2:
                    w.append('kvst'); state['kv'] = 3
                    post.append(signal(f"s{sCntKv}"))
            E(Op("s_barrier", waits=w)); used += 2
            E(post)
        if g + 6 < NG: E(frag_reads(typ, g + 6)); used += 2
        if g == 40: E(poll_issue("0", sDBG, 'pi')); used += 1
        if g == 100: E(poll_check("0", sDBG, 'pi', 1, f"init{typ}")); used += 3
        if ps == 0:
            if u == 0 and kk + 1 < 32: S.add('cv', center(kk + 1)[1], prio=5); S.add('aw', center(kk)[2], prio=-1)
            if u == 0 and kk == 31: S.add('aw', center(kk)[2], prio=-1)
            if u == 3:
                S.flush('cv')
                if kk + 2 < 32: E(center(kk + 2)[0]); used += 2
        if m == 11 or (m == 3 and nW < n + cfg.la):
            if nW < 20 and nW <= n + cfg.la:
                S.add('dma', w_dma(typ, nW, waits=f"xr{nW}" if nW < 8 else ()), prio=4); nW += 1
        bud = cfg.kv_budget if (state['kv'] == 1 or S.pending('kvr')) else cfg.budget
        S.fill(max(bud - used, 0))
    stamp(S, cfg, 2)
    S.flush()
    if typ == 'B':
        assert state['kv'] == 3, state
        print('; kv reduce at stage', state['kvn'])
    E("s_nop 7")
    for u in range(4): E(silu_epi(ACCB[typ][2][u], sA3, u, f'h3{u}'))
    last = 'h33'
    if typ == 'A':
        E(poll_issue(f"s{sCntKv}", sWS, 'pk'))
        E(poll_check(f"s{sCntKv}", sWS, 'pk', 16, "kv"))
        G = 64
        for rt in range(16):
            for rg in range(2):
                off = (rt % 3) * 1280 + rg * 640
                E(Op(f"buffer_load_dwordx4 {vr(G+8*rt+4*rg,4)}, v{kvo}, {srd(sWS)}, s{sKvp} offen offset:{off} sc1", tag=f'g{rt}', waits=last if rt == 0 and rg == 0 else ()))
            if rt % 3 == 2: E(f"s_add_u32 s{sKvp}, s{sKvp}, {3*1280}")
        for rt in range(1, 16):
            for r in range(8): E(Op(f"v_add_f32 v{G+r}, v{G+r}, v{G+8*rt+r}", waits=f'g{rt}' if r == 0 else ()))
        for j in range(4): E(f"v_cvt_pk_bf16_f32 v{G+8+j}, v{G+2*j}, v{G+2*j+1}")
        ln = t + 16
        E(Op(f"ds_write_b128 v{ln}, {vr(G+8,4)}", tag='ktw'))
        E(Op("s_barrier", waits='ktw'))
        for h in range(4): E(Op(f"ds_read_b128 {vr(208+4*h,4)}, v{ln+1} offset:{h*1024}", tag=f'kt{h}'))
        for h in range(4): E(Op(f"v_mfma_f32_32x32x16_bf16 {vr(blk(h),16)}, {vr(208+4*h,4)}, {vr(192+4*h,4)}, 0", waits=f'kt{h}'))
        for h in range(4):
            o = blk(h); num, den = (o, o + 8) if h % 2 == 0 else (o + 8, o)
            E(f"v_add_f32 v{den}, s{sEps6}, v{den}", f"v_rcp_f32 v{den}, v{den}", f"v_mul_f32 v{den}, s{sLn2}, v{den}")
            for r in range(8): E(f"v_mul_f32 v{num+r}, v{den}, v{num+r}")
            for j in range(4): E(f"v_cvt_pk_bf16_f32 v{den+4+j}, v{num+2*j}, v{num+2*j+1}")
            E(Op(f"buffer_store_dwordx4 {vr(den+4,4)}, v{vLane16}, {srd(sWS)}, s{sA2} offen offset:{h*1024} sc1", tag='ost'))
        last = 'ost'
    E(Op("s_barrier", waits=last))
    E(signal(f"s{sCntH}"))
    stamp(S, cfg, 3)
    return S.out

P2_ORDER = [(0, 0), (0, 2), (0, 12), (0, 14), (0, 20), (0, 22),
            (0, 4), (0, 6), (0, 8), (0, 10), (0, 16), (0, 18), (0, 24), (0, 26),
            (1, 0), (1, 2), (1, 4), (1, 6)]

def phase2(cfg):
    S = Sched(); E = S.emit
    t = vT
    ln, i7, i3, b1, sub = t, t + 1, t + 2, t + 3, t + 4
    E(f"v_and_b32 v{ln}, 63, v0", f"v_and_b32 v{i7}, 7, v{ln}", f"v_lshrrev_b32 v{i3}, 3, v{ln}", f"v_bfe_u32 v{b1}, v{ln}, 4, 1",
      f"v_lshlrev_b32 v{sub}, 2, v{b1}", f"v_xor_b32 v{sub}, v{i7}, v{sub}", f"v_lshlrev_b32 v{sub}, 4, v{sub}",
      f"v_lshl_add_u32 v{vDH}, v{i3}, 10, v{sub}")
    for j in range(1, 4): E(f"v_add_u32 v{vDH+j}, {j*7*1024}, v{vDH}")
    E(f"s_lshl_b32 s{sT0}, s{sC2}, 7",
      f"s_mul_i32 s{sB0}, s{sWave}, {448*1024}", f"s_add_u32 s{sB0}, s{sB0}, s{sT0}",
      f"s_lshl_b32 s{sB1}, s{sWave}, 17", f"s_add_u32 s{sB1}, s{sB1}, s{sT0}",
      f"s_mul_i32 s{sT1}, s{sR2}, {2*144*1024}",
      f"s_mul_i32 s{sAl0}, s{sWave}, {28*1024}", f"s_add_u32 s{sAl0}, s{sAl0}, s{sT1}",
      f"s_lshl_b32 s{sAl1}, s{sWave}, 13", f"s_add_u32 s{sAl1}, s{sAl1}, s{sT1}", f"s_add_u32 s{sAl1}, s{sAl1}, {112*1024}")
    def b_dma(n, waits=()):
        wo, kf = P2_ORDER[n]
        L = [Op(f"s_add_u32 m0, s{sM0}, {(n%8)*8192}"), Op(f"s_add_u32 s{sOff}, s{sB1 if wo else sB0}, {kf*16*1024}")]
        for j in range(4):
            L.append(Op(f"buffer_load_dwordx4 v{vDH+j}, {srd(sWO if wo else sWD)}, s{sOff} offen offset:{j*1024} lds", tag=f"B{n}", waits=waits if j == 0 else ()))
        return L
    for n in range(3): E(b_dma(n))
    E(poll_issue(f"s{sCntW}", sWS, 'ph'))
    hf, r4, rb, c4 = t + 5, t + 6, t + 7, t + 8
    vRB = vRF
    E(f"v_lshrrev_b32 v{hf}, 5, v{ln}", f"v_bfe_u32 v{r4}, v{ln}, 2, 2", f"v_lshrrev_b32 v{rb}, 1, v{r4}", f"v_and_b32 v{c4}, 3, v{ln}",
      f"v_lshl_or_b32 v{rb}, v{rb}, 1, v{b1}", f"v_lshlrev_b32 v{c4}, 3, v{c4}", f"v_lshl_add_u32 v{rb}, v{rb}, 5, v{c4}",
      f"v_lshl_add_u32 v{r4}, v{hf}, 2, v{r4}", f"v_lshl_add_u32 v{rb}, v{r4}, 7, v{rb}", f"v_add_u32 v{vRB}, s{sM0}, v{rb}",
      f"v_xor_b32 v{vRB+1}, 64, v{vRB}")
    vA2 = vRF + 2
    E(f"v_add_u32 v{vA2}, {144*1024}, v{vLane16}")
    vRes = vRF + 3
    E(f"s_lshl_b32 s{sRes}, s{sR2}, 2", f"s_add_u32 s{sRes}, s{sRes}, s{sWave}", f"s_lshl_b32 s{sRes}, s{sRes}, 14", f"s_lshl_b32 s{sT0}, s{sC2}, 7", f"s_add_u32 s{sRes}, s{sRes}, s{sT0}",
      f"v_lshlrev_b32 v{vRes}, 4, v{i7}", f"v_lshl_add_u32 v{vRes}, v{i3}, 10, v{vRes}", f"s_add_u32 s{sRes+1}, s{sRes}, 8192")
    E(poll_check(f"s{sCntW}", sWS, 'ph', 4, "h"))
    stamp(S, cfg, 4)
    vAr = 128; NA = 4
    def a_loads(n):
        wo, kf = P2_ORDER[n]
        L = [Op(f"s_add_u32 s{sT1}, s{sAl1 if wo else sAl0}, {kf*1024}")]
        for k in range(2):
            for rbk in range(2):
                r = vAr + 16 * (n % NA) + 8 * k + 4 * rbk
                L.append(Op(f"buffer_load_dwordx4 {vr(r,4)}, v{vA2 if rbk else vLane16}, {srd(sWS)}, s{sT1} offen offset:{k*1024} sc1", tag=f"A{n}_{k}"))
        return L
    def b_reads(n):
        L = []
        for k in range(2):
            for nf in range(2):
                r = aW + 16 * (n % 2) + 8 * k + 4 * nf
                for z in range(2):
                    L.append(Op(f"ds_read_b64_tr_b16 {ar(r+2*z,2)}, v{vRB+nf} offset:{(n%8)*8192+k*2048+z*1024}", tag=f"br{n}_{k}", waits=f"B{n}" if not L else ()))
        return L
    for n in range(2): E(a_loads(n))
    xr = 248
    E(b_reads(0))
    for n in range(18):
        if n + 2 < 18: S.add('ld', a_loads(n + 2))
        if n + 3 < 18: S.add('ld', b_dma(n + 3))
        if n == 15:
            S.add('ld', [Op(f"buffer_load_dwordx4 {vr(xr+4*m,4)}, v{vRes}, {srd(sX)}, s{sRes+m} offen", tag='res') for m in range(2)])
        if n + 1 < 18: S.add('ld', b_reads(n + 1))
        for k in range(2):
            for rbk in range(2):
                for nf in range(2):
                    d = blk(2 * rbk + nf)
                    cin = "0" if n == 0 and k == 0 else vr(d, 16)
                    w = [f"A{n}_{k}", f"br{n}_{k}"] if rbk == 0 and nf == 0 else []
                    E(Op(f"v_mfma_f32_32x32x16_bf16 {vr(d,16)}, {ar(aW+16*(n%2)+8*k+4*nf,4)}, {vr(vAr+16*(n%NA)+8*k+4*rbk,4)}, {cin}", waits=w))
                    S.fill(3)
        S.flush()
    stamp(S, cfg, 5)
    wa = 2
    s_, x_ = t + 9, t + 10
    E(f"v_and_b32 v{s_}, 15, v{ln}", f"v_xor_b32 v{x_}, v{hf}, v{s_}", f"v_lshlrev_b32 v{x_}, 4, v{x_}", f"v_lshl_add_u32 v{x_}, v{s_}, 8, v{x_}",
      f"v_lshl_add_u32 v{x_}, v{b1}, 13, v{x_}", f"v_add_u32 v{wa}, s{sM0}, v{x_}")
    for q in range(1, 8): E(f"v_xor_b32 v{wa+q}, {q*32}, v{wa}")
    ra = 192
    E(f"v_lshlrev_b32 v{x_}, 1, v{i7}", f"v_xor_b32 v{x_}, v{x_}, v{i3}", f"v_lshlrev_b32 v{x_}, 4, v{x_}", f"v_lshl_add_u32 v{x_}, v{i3}, 8, v{x_}",
      f"s_lshl_b32 s{sT0}, s{sWave}, 13", f"v_add_u32 v{ra}, s{sT0}, v{x_}", f"v_xor_b32 v{ra+1}, 16, v{ra}",
      f"v_xor_b32 v{ra+2}, {2048+128}, v{ra}", f"v_xor_b32 v{ra+3}, {2048+128}, v{ra+1}")
    for q in range(4): E(f"v_add_u32 v{ra+4+q}, 65536, v{ra+q}")
    for rbk in range(2):
        for nf in range(2):
            for g in range(4):
                E(Op(f"ds_write_b128 v{wa+4*nf+g}, {vr(blk(2*rbk+nf)+4*g,4)} offset:{rbk*16384}", tag='rw'))
    E(Op("s_barrier", waits='rw'))
    P = 128
    for src in range(4):
        for q in range(4):
            E(Op(f"ds_read_b128 {vr(P+16*src+4*q,4)}, v{ra+4*(src>>1)+q} offset:{(src&1)*4096}", tag=f'rr{src}'))
    for d in range(8):
        E(Op(f"v_lshlrev_b32 v{64+2*d}, 16, v{xr+d}", waits='res' if d == 0 else ()), f"v_and_b32 v{65+2*d}, 0xffff0000, v{xr+d}")
    for src in range(4):
        for r in range(16): E(Op(f"v_add_f32 v{64+r}, v{64+r}, v{P+16*src+r}", waits=f'rr{src}' if r == 0 else ()))
    for d in range(8): E(f"v_cvt_pk_bf16_f32 v{80+d}, v{64+2*d}, v{65+2*d}")
    for m in range(2): E(f"buffer_store_dwordx4 {vr(80+4*m,4)}, v{vRes}, {srd(sOUT)}, s{sRes+m} offen")
    stamp(S, cfg, 6)
    return S.out

def generate(cfg):
    del SLOW[:]
    pre = prologue(cfg)
    for c in range(cfg.la_x): pre += dma_stage(c, vDH, sX, f"X{c}", step=128 if c else None)
    pre += setup2(cfg)
    pre += [f"s_cmp_eq_u32 s{sType}, 0", "s_cbranch_scc0 L_typeB"]
    npre = len(finalize(pre))
    pa = finalize(pre + phase1('A', cfg) + ["s_waitcnt vmcnt(0) lgkmcnt(0)"], True)
    pb = finalize(pre + phase1('B', cfg) + ["s_waitcnt vmcnt(0) lgkmcnt(0)"], True)
    assert pa[:npre] == pb[:npre]
    p2 = finalize(phase2(cfg), True)
    body = pa + ["s_branch L_phase2", "L_typeB:"] + pb[npre:] + ["L_phase2:"] + p2 + ["s_endpgm"] + SLOW + ["L_end:"]
    hdr = open('header.txt').read()
    txt = hdr + "; @launch grid=(256,1,1) block=(256,1,1) lds=163840\n"
    txt += f""".amdgcn_target "amdgcn-amd-amdhsa--gfx950"
.text
.globl {NAME}_kernel
.p2align 8
.type {NAME}_kernel,@function
{NAME}_kernel:
"""
    txt += "\n".join(("" if l.endswith(':') else "    ") + l for l in body)
    txt += f"""
    s_endpgm
.section .rodata,"a"
.p2align 6
.amdhsa_kernel {NAME}_kernel
  .amdhsa_next_free_vgpr 512
  .amdhsa_next_free_sgpr 102
  .amdhsa_accum_offset 256
  .amdhsa_group_segment_fixed_size 0
  .amdhsa_kernarg_size 80
  .amdhsa_user_sgpr_count 2
  .amdhsa_user_sgpr_kernarg_segment_ptr 1
  .amdhsa_system_sgpr_workgroup_id_x 1
.end_amdhsa_kernel
"""
    return txt

if __name__ == '__main__':
    cfg = Cfg()
    out = sys.argv[1] if len(sys.argv) > 1 else 'k1.s'
    for a in sys.argv[2:]:
        k, v = a.split('='); setattr(cfg, k, int(v))
    open(out, 'w').write(generate(cfg))
```

```python
import sys, struct
from asmfw import *

NAME = 'parallel_sum__linear_attn_block__swiglu_ffn__prompt'
def f2u(x): return struct.unpack('<I', struct.pack('<f', x))[0]
LOG2E = 1.4426950408889634; LN2 = 0.6931471805599453

WS_A   = 0
WS_KVP = 10 << 20
WS_CNT = 12 << 20
WS_TS  = 16 << 20
WS_SIZE = 1 << 28
BIG = 0x40000000
MISC = 131072

sX, sWF, sWQ, sWS, sDBG, sWD, sWO, sOUT = 24, 28, 32, 36, 40, 44, 48, 52
sWave, sRt, sP, sType, sM0, sStrip = 56, 57, 58, 59, 60, 61
sOff = 62
sF1, sF2, sF3 = 63, 64, 65
sA1, sA2, sA3 = 66, 67, 68
sDelta, sLn2, sEps6 = 69, 70, 71
sT0, sT1, sT2, sT3 = 72, 73, 74, 75
sKvp, sCntKv, sCntH, sCntW = 76, 77, 78, 79
sMaskHi = 80
sR2, sC2 = 82, 83
sB0, sB1, sAl0, sAl1 = 84, 85, 86, 87
sRes = 88
sTS = 90
sTSb = 92
sSpin = 93
def srd(b): return f"s[{b}:{b+3}]"

vTid, vLane16 = 0, 1
vDF = 2
vDQ = 6
vDH = 10
vRF = 14
vRQ = 18
vRH = 22
vC1, vVar = 24, 25
vSig, vInit = 26, 27
vId = 28
vOne = 30
vPoll = 31
vNm = 32
vT = 36
vAcc = 64
vX = 128
aXC = 0
aW = 128
def blk(b): return vAcc + 16 * b
def vr(a, n): return f"v[{a}:{a+n-1}]"
def ar(a, n): return f"a[{a}:{a+n-1}]"

class Cfg:
    la_x = 3
    la = 4
    budget = 5
    kv_budget = 9
    stamps = False
    codepf = True
    diag_total = 0
    diag_a = -1; diag_b = -1

def stamp(S, cfg, idx):
    if cfg.diag_a == idx: S.emit(Op("s_memrealtime s[94:95]"), Op("s_waitcnt lgkmcnt(0)"))
    if cfg.diag_b == idx: S.emit(Op("s_memrealtime s[90:91]"), Op("s_waitcnt lgkmcnt(0)"))
    if not cfg.stamps: return
    S.emit(Op(f"s_memtime s[{sTS}:{sTS+1}]"), Op("s_memrealtime s[100:101]"), Op("s_waitcnt lgkmcnt(0)"),
           Op(f"v_mov_b32 v{vPoll}, s{sTS}"),
           Op(f"buffer_store_dword v{vPoll}, off, {srd(sWS)}, s{sTSb} offset:{4*idx}"),
           Op(f"v_mov_b32 v{vPoll}, s100"),
           Op(f"buffer_store_dword v{vPoll}, off, {srd(sWS)}, s{sTSb} offset:{64+4*idx}"))

def prologue(cfg):
    L = []; A = L.append
    A("s_cmp_ge_u32 s2, 256"); A("s_cbranch_scc1 L_end")
    A("s_load_dwordx16 s[4:19], s[0:1], 0"); A("s_load_dwordx4 s[20:23], s[0:1], 64")
    if cfg.stamps: A("s_memtime s[94:95]"); A("s_memrealtime s[100:101]")
    if cfg.diag_total: A("s_memrealtime s[100:101]"); A("s_memrealtime s[94:95]"); A("s_memrealtime s[90:91]")
    if cfg.codepf:
        A("s_getpc_b64 s[96:97]")
        A("L_pc:")
        A("s_lshr_b32 s3, s2, 3"); A("s_and_b32 s3, s3, 7"); A("s_lshl_b32 s3, s3, 13")
        A(f"v_and_b32 v{vT}, 63, v0"); A(f"v_lshlrev_b32 v{vT}, 7, v{vT}"); A(f"v_add_u32 v{vT}, s3, v{vT}")
        A(f"v_min_u32 v{vT}, L_end-L_pc, v{vT}")
        A(f"v_cmp_gt_u32 vcc, 64, v0"); A("s_and_saveexec_b64 s[98:99], vcc"); A("s_cbranch_execz L_nopf")
        A(Op(f"global_load_dword v63, v{vT}, s[96:97]", raw=True))
        A("L_nopf:"); A("s_mov_b64 exec, s[98:99]")
    t = vT
    ln, i7, i3, b4 = t + 1, t + 2, t + 3, t + 4
    A(f"v_lshrrev_b32 v{t}, 6, v0"); A(f"v_and_b32 v{ln}, 63, v0"); A(f"v_readfirstlane_b32 s{sWave}, v{t}")
    A(f"v_lshlrev_b32 v{vLane16}, 4, v{ln}")
    A(f"s_and_b32 s{sT0}, s2, 7"); A(f"s_lshr_b32 s{sT1}, s2, 3")
    A(f"s_and_b32 s{sRt}, s{sT0}, 1"); A(f"s_lshl_b32 s{sRt}, s{sRt}, 3"); A(f"s_and_b32 s{sT2}, s{sT1}, 7"); A(f"s_add_u32 s{sRt}, s{sRt}, s{sT2}")
    A(f"s_lshr_b32 s{sT2}, s{sT1}, 3")
    A(f"s_and_b32 s{sType}, s{sT2}, 1")
    A(f"s_lshr_b32 s{sT2}, s{sT2}, 1")
    A(f"s_and_b32 s{sP}, s{sT0}, 6"); A(f"s_add_u32 s{sP}, s{sP}, s{sT2}")
    A(f"s_lshr_b32 s{sStrip}, s{sWave}, 1")
    A(f"s_lshl_b32 s{sM0}, s{sStrip}, 16"); A(f"s_and_b32 s{sT3}, s{sWave}, 1"); A(f"s_lshl_b32 s{sT0}, s{sT3}, 12"); A(f"s_add_u32 s{sM0}, s{sM0}, s{sT0}")
    A(f"v_and_b32 v{i7}, 7, v{ln}"); A(f"v_lshrrev_b32 v{i3}, 3, v{ln}"); A(f"v_lshrrev_b32 v{b4}, 4, v{ln}")
    A(f"v_xor_b32 v{t+5}, v{i7}, v{b4}"); A(f"v_lshlrev_b32 v{t+5}, 4, v{t+5}"); A(f"v_lshl_add_u32 v{vDH}, v{i3}, 10, v{t+5}")
    A(f"v_xor_b32 v{vDH+1}, 64, v{vDH}"); A(f"v_add_u32 v{vDH+1}, {7*1024}, v{vDH+1}")
    A(f"v_add_u32 v{vDH+2}, {14*1024}, v{vDH}"); A(f"v_add_u32 v{vDH+3}, {14*1024}, v{vDH+1}")
    A(f"s_lshl_b32 s{sOff}, s{sRt}, 2"); A(f"s_add_u32 s{sOff}, s{sOff}, s{sWave}")
    A(f"s_mul_i32 s{sA1}, s{sOff}, {144*1024}")
    A(f"s_lshl_b32 s{sOff}, s{sOff}, 15")
    A("s_waitcnt lgkmcnt(0)")
    A(f"s_mov_b32 s{sX}, s4"); A(f"s_mov_b32 s{sX+1}, s5"); A(f"s_mov_b32 s{sX+2}, {2048*1024}"); A(f"s_mov_b32 s{sX+3}, 0x20000")
    return L

def setup2(cfg):
    L = []; A = L.append
    t = vT
    ln, i7, i3, b4 = t + 1, t + 2, t + 3, t + 4
    def mk(b, lo, n):
        A(f"s_mov_b32 s{b}, s{lo}"); A(f"s_mov_b32 s{b+1}, s{lo+1}"); A(f"s_mov_b32 s{b+2}, {n}"); A(f"s_mov_b32 s{b+3}, 0x20000")
    mk(sWS, 22, WS_SIZE); mk(sDBG, 20, 256); mk(sWQ, 6, 512 * 3072); mk(sWD, 16, 1792 * 1024); mk(sWO, 8, 512 * 1024); mk(sOUT, 18, 2048 * 1024)
    A(f"s_cmp_eq_u32 s{sStrip}, 0"); A(f"s_cselect_b32 s{sWF}, s12, s14"); A(f"s_cselect_b32 s{sWF+1}, s13, s15")
    A(f"s_mov_b32 s{sWF+2}, {512*3584}"); A(f"s_mov_b32 s{sWF+3}, 0x20000")
    if cfg.stamps:
        A(f"s_lshl_b32 s{sTSb}, s2, 2"); A(f"s_add_u32 s{sTSb}, s{sTSb}, s{sWave}"); A(f"s_lshl_b32 s{sTSb}, s{sTSb}, 7"); A(f"s_add_u32 s{sTSb}, s{sTSb}, {WS_TS}")
        A(f"v_mov_b32 v{vPoll}, s94"); A(f"buffer_store_dword v{vPoll}, off, {srd(sWS)}, s{sTSb}")
        A(f"v_mov_b32 v{vPoll}, s100"); A(f"buffer_store_dword v{vPoll}, off, {srd(sWS)}, s{sTSb} offset:64")
    A(f"v_lshlrev_b32 v{vInit}, 8, v0"); A(f"v_add_u32 v{vInit}, {WS_CNT}, v{vInit}")
    A(f"s_cmp_eq_u32 s2, 0"); A(f"s_cselect_b32 s{sT0}, 0, {BIG}")
    A(f"v_or_b32 v{vInit}, s{sT0}, v{vInit}")
    A(f"v_mov_b32 v{t+5}, 0")
    A(Op(f"buffer_store_dword v{t+5}, v{vInit}, {srd(sWS)}, 0 offen sc1", tag='init'))
    A(f"v_mov_b32 v{vOne}, 1")
    A(f"v_cmp_eq_u32 vcc, 0, v0"); A(f"v_mov_b32 v{t+6}, {BIG}"); A(f"v_cndmask_b32 v{vSig}, v{t+6}, v{t+5}, vcc")
    A(f"v_or_b32 v{vInit}, s{sT0}, v{vSig}")
    b1, pos, sub, row = t + 5, t + 6, t + 7, t + 8
    A(f"v_and_b32 v{b1}, 1, v{b4}"); A(f"v_lshrrev_b32 v{pos}, 1, v{i7}"); A(f"v_and_b32 v{sub}, 1, v{ln}"); A(f"v_lshlrev_b32 v{sub}, 4, v{sub}")
    A(f"s_and_b32 s{sT3}, s{sWave}, 1"); A(f"s_lshl_b32 s{sT0}, s{sT3}, 5"); A(f"v_add_u32 v{row}, s{sT0}, v{i3}")
    A(f"s_lshl_b32 s{sT1}, s{sStrip}, 1"); A(f"v_or_b32 v{t+9}, s{sT1}, v{b1}"); A(f"v_xor_b32 v{t+9}, v{pos}, v{t+9}")
    A(f"v_lshl_add_u32 v{t+9}, v{t+9}, 5, v{sub}"); A(f"v_mul_u32_u24 v{vDF}, 3584, v{row}"); A(f"v_add_u32 v{vDF}, v{vDF}, v{t+9}")
    for j in range(1, 4): A(f"v_add_u32 v{vDF+j}, {j*(8*3584-1024)}, v{vDF}")
    A(f"v_lshlrev_b32 v{t+9}, 1, v{b1}"); A(f"v_xor_b32 v{t+9}, v{pos}, v{t+9}"); A(f"v_lshl_add_u32 v{t+9}, v{t+9}, 5, v{sub}")
    A(f"v_mul_u32_u24 v{vDQ}, 3072, v{row}"); A(f"v_add_u32 v{vDQ}, v{vDQ}, v{t+9}")
    for j in range(1, 4): A(f"v_add_u32 v{vDQ+j}, {j*(8*3072-1024)}, v{vDQ}")
    hf, r4, c4, rb = t + 10, t + 11, t + 12, t + 13
    A(f"v_lshrrev_b32 v{hf}, 5, v{ln}"); A(f"v_bfe_u32 v{r4}, v{ln}, 2, 2"); A(f"v_and_b32 v{c4}, 3, v{ln}"); A(f"v_lshlrev_b32 v{c4}, 3, v{c4}")
    A(f"v_lshl_add_u32 v{row}, v{hf}, 3, v{r4}")
    A(f"v_lshrrev_b32 v{rb}, 1, v{r4}")
    A(f"v_lshl_or_b32 v{t+9}, v{b1}, 1, v{rb}"); A(f"v_lshl_add_u32 v{t+9}, v{t+9}, 5, v{c4}"); A(f"v_lshl_add_u32 v{t+9}, v{row}, 7, v{t+9}")
    A(f"v_lshl_add_u32 v{vRF}, v{b1}, 16, v{t+9}")
    for u in range(1, 4): A(f"v_xor_b32 v{vRF+u}, {32*u}, v{vRF}")
    A(f"v_lshl_or_b32 v{t+9}, v{rb}, 1, v{b1}"); A(f"v_lshl_add_u32 v{t+9}, v{t+9}, 5, v{c4}"); A(f"v_lshl_add_u32 v{vRQ}, v{row}, 7, v{t+9}")
    A(f"v_xor_b32 v{vRQ+1}, 64, v{vRQ}"); A(f"v_add_u32 v{vRQ+2}, 65536, v{vRQ}"); A(f"v_add_u32 v{vRQ+3}, 65536, v{vRQ+1}")
    A(f"v_lshl_add_u32 v{t+9}, v{b1}, 5, v{c4}"); A(f"v_lshl_add_u32 v{t+9}, v{row}, 6, v{t+9}"); A(f"v_lshl_add_u32 v{vRH}, v{b1}, 16, v{t+9}")
    A(f"v_xor_b32 v{vRH+1}, 32, v{vRH}")
    A(f"v_cmp_eq_u32 s[{sMaskHi}:{sMaskHi+1}], 1, v{b1}")
    A(f"v_mov_b32 v{t+9}, 0x3f80"); A(f"v_lshlrev_b32 v{t+9}, v{sub}, v{t+9}")
    A(f"v_and_b32 v{t+14}, 2, v{ln}"); A(f"v_cmp_eq_u32 vcc, 0, v{t+14}")
    A(f"v_mov_b32 v{t+14}, 0")
    A(f"v_cndmask_b32 v{vId}, v{t+14}, v{t+9}, vcc"); A(f"v_cndmask_b32 v{vId+1}, v{t+9}, v{t+14}, vcc")
    r = t + 9
    A(f"v_and_b32 v{r}, 31, v{ln}"); A(f"v_bfe_u32 v{t+14}, v{ln}, 1, 3"); A(f"v_xor_b32 v{t+14}, v{t+14}, v{hf}")
    A(f"v_lshlrev_b32 v{t+14}, 4, v{t+14}"); A(f"v_lshl_add_u32 v{t+14}, v{r}, 7, v{t+14}"); A(f"v_add_u32 v{t+16}, s{sM0}, v{t+14}")
    for k in range(1, 4): A(f"v_xor_b32 v{t+16+k}, {32*k}, v{t+16}")
    for k in range(4): A(f"v_mov_b32 v{t+20+k}, 0")
    A(f"v_mov_b32 v{t+24}, 0x3f803f80")
    A(f"s_mov_b32 s{sSpin}, 200000")
    A(f"s_mov_b32 s{sDelta}, {hex(f2u(1e-6/LN2))}"); A(f"s_mov_b32 s{sLn2}, {hex(f2u(LN2))}"); A(f"s_mov_b32 s{sEps6}, {hex(f2u(1e-6))}")
    A(f"s_lshl_b32 s{sT0}, s{sP}, 2"); A(f"s_add_u32 s{sT0}, s{sT0}, s{sWave}"); A(f"s_mul_i32 s{sKvp}, s{sT0}, {16*1280}"); A(f"s_add_u32 s{sKvp}, s{sKvp}, {WS_KVP}")
    A(f"s_lshl_b32 s{sCntKv}, s{sP}, 8"); A(f"s_add_u32 s{sCntKv}, s{sCntKv}, {WS_CNT + 192*256}")
    A(f"s_lshr_b32 s{sT0}, s{sP}, 1"); A(f"s_lshl_b32 s{sT1}, s{sRt}, 2"); A(f"s_add_u32 s{sT0}, s{sT0}, s{sT1}")
    A(f"s_lshl_b32 s{sCntH}, s{sT0}, 8"); A(f"s_add_u32 s{sCntH}, s{sCntH}, {WS_CNT}")
    A(f"s_and_b32 s{sT0}, s2, 7"); A(f"s_lshl_b32 s{sT0}, s{sT0}, 2"); A(f"s_bfe_u32 s{sT1}, s2, 0x20003"); A(f"s_add_u32 s{sR2}, s{sT0}, s{sT1}")
    A(f"s_lshr_b32 s{sC2}, s2, 5")
    A(f"s_lshr_b32 s{sT0}, s{sR2}, 1"); A(f"s_lshl_b32 s{sT0}, s{sT0}, 2"); A(f"s_add_u32 s{sT0}, s{sT0}, s{sWave}")
    A(f"s_lshl_b32 s{sCntW}, s{sT0}, 8"); A(f"s_add_u32 s{sCntW}, s{sCntW}, {WS_CNT}")
    return L

def type_setup(typ):
    L = []; A = L.append
    A(f"s_mul_i32 s{sT0}, s{sP}, 14"); A(f"s_and_b32 s{sT1}, s{sP}, 1"); A(f"s_cmp_eq_u32 s{sT1}, 0")
    if typ == 'A':
        A(f"s_cselect_b32 s{sT1}, 0, 6"); A(f"s_add_u32 s{sT0}, s{sT0}, s{sT1}")
        A(f"s_lshl_b32 s{sF1}, s{sT0}, 5"); A(f"s_add_u32 s{sF3}, s{sF1}, 128")
        A(f"s_mul_i32 s{sF2}, s{sStrip}, {64*3072}"); A(f"s_lshl_b32 s{sT1}, s{sP}, 7"); A(f"s_add_u32 s{sF2}, s{sF2}, s{sT1}")
        A(f"s_lshl_b32 s{sT1}, s{sP}, 12"); A(f"s_add_u32 s{sA2}, s{sA1}, s{sT1}"); A(f"s_add_u32 s{sA2}, s{sA2}, {112*1024}")
        A(f"s_lshl_b32 s{sT0}, s{sT0}, 10"); A(f"s_add_u32 s{sA1}, s{sA1}, s{sT0}"); A(f"s_add_u32 s{sA3}, s{sA1}, 4096")
    else:
        A(f"s_cselect_b32 s{sT1}, 12, 0"); A(f"s_cselect_b32 s{sT2}, 8, 2")
        A(f"s_add_u32 s{sT1}, s{sT0}, s{sT1}"); A(f"s_add_u32 s{sT2}, s{sT0}, s{sT2}")
        A(f"s_lshl_b32 s{sF2}, s{sT1}, 5"); A(f"s_lshl_b32 s{sF3}, s{sT2}, 5")
        A(f"s_lshl_b32 s{sT1}, s{sT1}, 10"); A(f"s_add_u32 s{sA2}, s{sA1}, s{sT1}")
        A(f"s_lshl_b32 s{sT2}, s{sT2}, 10"); A(f"s_add_u32 s{sA3}, s{sA1}, s{sT2}")
        A(f"s_lshl_b32 s{sF1}, s{sStrip}, 10"); A(f"s_lshl_b32 s{sT1}, s{sP}, 7"); A(f"s_add_u32 s{sF1}, s{sF1}, s{sT1}"); A(f"s_add_u32 s{sF1}, s{sF1}, 1024")
        A(f"s_mul_i32 s{sT0}, s{sRt}, 1280"); A(f"s_add_u32 s{sKvp}, s{sKvp}, s{sT0}")
    return L

def dma_stage(slot, voff, srdb, tag, first=None, step=None, waits=()):
    L = []
    L.append(Op(f"s_add_u32 m0, s{sM0}, {slot*8192}" if slot else f"s_mov_b32 m0, s{sM0}"))
    if first is not None: L.append(Op(f"s_mov_b32 s{sOff}, s{first}"))
    elif step: L.append(Op(f"s_add_u32 s{sOff}, s{sOff}, {step}"))
    for j in range(4):
        L.append(Op(f"buffer_load_dwordx4 v{voff+j}, {srd(srdb)}, s{sOff} offen offset:{j*1024} lds", tag=tag if j == 3 else None, waits=waits if j == 0 else ()))
    return L

def w_dma(typ, n, waits=()):
    kinds = {'A': ['F4', 'Q2', 'F4'], 'B': ['KV', 'F2', 'F4']}[typ]
    ps, i = (0, n) if n < 8 else ((1, n - 8) if n < 12 else (2, n - 12))
    k = kinds[ps]
    voff, sr, step = {'F4': (vDF, sWF, 64 * 3584), 'KV': (vDQ, sWQ, 64 * 3072), 'Q2': (vDQ, sWQ, 128 * 3072), 'F2': (vDH, sWF, 128 * 3584)}[k]
    return dma_stage(n % 8, voff, sr, f"W{n}", first=[sF1, sF2, sF3][ps] if i == 0 else None, step=step, waits=waits)

def frag_info(typ, g):
    n, m = divmod(g, 16)
    kinds = {'A': ['F4', 'Q2', 'F4'], 'B': ['KV', 'F2', 'F4']}[typ]
    ps, i = (0, n) if n < 8 else ((1, n - 8) if n < 12 else (2, n - 12))
    k = kinds[ps]; sl = (n % 8) * 8192
    if k == 'F4': t, u = divmod(m, 4); return ps, k, 4 * i + t, u, vRF + u, sl + t * 2048, 512
    if k == 'KV': t, u = divmod(m, 4); return ps, k, 4 * i + t, u, vRQ + u, sl + t * 2048, 512
    if k == 'Q2': t, u = divmod(m, 2); return ps, k, 8 * i + t, u, vRQ + u + 2 * (t >> 2), sl + (t & 3) * 2048, 512
    if k == 'F2': t, u = divmod(m, 2); return ps, k, 8 * i + t, u, vRH + u, sl + t * 1024, 256

def frag_reads(typ, g):
    ps, k, kk, u, a, imm, st = frag_info(typ, g)
    r = aW + 4 * (g % 8)
    return [Op(f"ds_read_b64_tr_b16 {ar(r,2)}, v{a} offset:{imm}"), Op(f"ds_read_b64_tr_b16 {ar(r+2,2)}, v{a} offset:{imm+st}", tag=f"f{g}")]

ACCB = {'A': [[0, 1, 2, 3], [4, 5], [6, 7, 0, 1]], 'B': [[0, 1, 2, 3], [4, 5], [6, 7, 0, 2]]}

def silu_epi(b, sA, u, tag):
    g = blk(b); L = []
    for h in (0, 4):
        R = range(h, h + 4)
        for r in R: L.append(f"v_mul_f32 v{g+8+r}, v{g+r}, v{g+8+r}")
        for r in R: L.append(f"v_mul_f32 v{g+r}, v{vC1}, v{g+r}")
        for r in R: L.append(f"v_exp_f32 v{g+r}, v{g+r}")
        for r in R: L.append(f"v_fma_f32 v{g+r}, v{g+r}, v{vVar}, v{vVar}")
        for r in R: L.append(f"v_rcp_f32 v{g+r}, v{g+r}")
        for r in R: L.append(f"v_mul_f32 v{g+8+r}, v{g+r}, v{g+8+r}")
    for j in range(4): L.append(f"v_cvt_pk_bf16_f32 v{g+j}, v{g+8+2*j}, v{g+9+2*j}")
    L.append(Op(f"buffer_store_dwordx4 {vr(g,4)}, v{vLane16}, {srd(sWS)}, s{sA} offen offset:{u*1024} sc1", tag=tag))
    return L

def phi_epi(b, scale, dst, tmp):
    g = blk(b); L = []
    for h in range(0, 16, 4):
        R = range(h, h + 4)
        for r in R: L.append(f"v_fma_f32 v{g+r}, v{g+r}, {scale(r)}, s{sDelta}")
        for r in R: L.append(f"v_exp_f32 v{tmp+r-h}, v{g+r} clamp")
        for r in R: L.append(f"v_max_f32 v{g+r}, s{sDelta}, v{g+r}")
        for r in R: L.append(f"v_fmac_f32 v{tmp+r-h}, s{sLn2}, v{g+r}")
        for j in range(2): L.append(f"v_cvt_pk_bf16_f32 v{dst+h//2+j}, v{tmp+2*j}, v{tmp+2*j+1}")
    return L

def poll_issue(sCnt, srdb, tag):
    return Op(f"buffer_load_dword v{vPoll}, off, {srd(srdb)}, {sCnt} sc1", tag=tag)

SLOW = []
def poll_check(sCnt, srdb, tag, target, name):
    L = [Op(f"v_readfirstlane_b32 s{sT0}, v{vPoll}", waits=tag), f"s_cmp_ge_u32 s{sT0}, {target}", f"s_cbranch_scc0 L_slow_{name}", f"L_back_{name}:"]
    SLOW.extend([f"L_slow_{name}:", f"s_sub_u32 s{sSpin}, s{sSpin}, 1", f"s_cbranch_scc1 L_back_{name}", "s_sleep 2", f"buffer_load_dword v{vPoll}, off, {srd(srdb)}, {sCnt} sc1", "s_waitcnt vmcnt(0)",
                 f"v_readfirstlane_b32 s{sT0}, v{vPoll}", "s_nop 0", f"s_cmp_ge_u32 s{sT0}, {target}", f"s_cbranch_scc0 L_slow_{name}", f"s_branch L_back_{name}"])
    L[0].cost = 3
    return L

def signal(sCnt):
    return Op(f"buffer_atomic_add v{vOne}, v{vSig}, {srd(sWS)}, {sCnt} offen sc1")

def center(kk):
    x = vX + 4 * kk; tmp = vT + 8 * (kk % 2)
    m4 = [f"v_mfma_f32_4x4x4_16b_bf16 {vr(tmp,4)}, {vr(vId,2)}, {vr(x,2)}, {vr(vNm,4)}",
          f"v_mfma_f32_4x4x4_16b_bf16 {vr(tmp+4,4)}, {vr(vId,2)}, {vr(x+2,2)}, {vr(vNm,4)}"]
    cv = [f"v_cvt_pk_bf16_f32 v{x+j}, v{tmp+2*j}, v{tmp+2*j+1}" for j in range(4)]
    aw = [f"v_accvgpr_write_b32 a{aXC+4*kk+j}, v{x+j}" for j in range(4)]
    return m4, cv, aw

def phase1(typ, cfg):
    S = Sched(); E = S.emit
    t = vT
    E(type_setup(typ))
    def xread(c): return [Op(f"ds_read_b128 {vr(vX+16*c+4*k,4)}, v{t+16+k} offset:{c*8192}", tag=f"xr{c}", waits=f"X{c}" if k == 0 else ()) for k in range(4)]
    def xstat(c):
        L = []
        for d in range(16):
            r = vX + 16 * c + d
            L.append(Op(f"v_dot2c_f32_bf16 v{t+20+d%2}, v{r}, v{t+24}", waits=f"xr{c}" if d == 0 else ()))
            L.append(f"v_dot2c_f32_bf16 v{t+22+d%2}, v{r}, v{r}")
        return L
    nW = 0
    for c in range(8):
        E(xread(c))
        nx = c + cfg.la_x
        if nx < 8: E(dma_stage(nx, vDH, sX, f"X{nx}", step=128))
        else: E(w_dma(typ, nW, waits=f"xr{nW}")); nW += 1
        E(xstat(c))
    stamp(S, cfg, 1)
    s1, s2, a, b = t + 20, t + 22, t + 25, t + 26
    E(f"v_add_f32 v{s1}, v{s1}, v{s1+1}", f"v_add_f32 v{s2}, v{s2}, v{s2+1}",
      f"v_mov_b32 v{a}, v{s1}", f"v_mov_b32 v{b}, v{s2}",
      f"v_permlane32_swap_b32 v{s1}, v{a}", f"v_permlane32_swap_b32 v{s2}, v{b}",
      f"v_add_f32 v{s1}, v{s1}, v{a}", f"v_add_f32 v{s2}, v{s2}, v{b}",
      f"v_mul_f32 v{s1}, {hex(f2u(-1/512))}, v{s1}",
      f"v_cvt_pk_bf16_f32 v{a}, v{s1}, v{s1}", f"v_and_b32 v{vNm}, 0xffff0000, v{a}",
      f"v_mov_b32 v{vNm+1}, v{vNm}", f"v_mov_b32 v{vNm+2}, v{vNm}", f"v_mov_b32 v{vNm+3}, v{vNm}")
    for kk in range(2): E(center(kk)[0])
    E(Op("s_barrier", waits=["W0", "init"]))
    E(Op(f"buffer_store_dword v{vOne}, v{vInit}, {srd(sDBG)}, 0 offen sc1"))
    for g in range(6): E(frag_reads(typ, g))
    E(center(0)[1])
    rest = [f"v_mul_f32 v{s2}, {hex(f2u(1/512))}, v{s2}", f"v_fma_f32 v{s2}, -v{s1}, v{s1}, v{s2}", f"v_max_f32 v{s2}, 0, v{s2}",
            f"v_cvt_pk_bf16_f32 v{a}, v{s2}, v{s2}", f"v_and_b32 v{a}, 0xffff0000, v{a}", f"v_add_f32 v{a}, {hex(f2u(1e-5))}, v{a}",
            f"v_cvt_pk_bf16_f32 v{a}, v{a}, v{a}", f"v_and_b32 v{a}, 0xffff0000, v{a}", f"v_sqrt_f32 v{a}, v{a}",
            f"v_cvt_pk_bf16_f32 v{a}, v{a}, v{a}", f"v_and_b32 v{a}, 0xffff0000, v{a}",
            f"v_mul_f32 v{vVar}, v{a}, v{a}", f"v_rcp_f32 v{a}, v{a}", f"v_mul_f32 v{vC1}, {hex(f2u(-LOG2E))}, v{a}"]
    E(rest)
    vCr = 192
    if typ == 'B':
        ln = t + 16
        E(f"v_and_b32 v{ln}, 63, v0", f"s_and_b32 s{sT0}, s{sWave}, 1", f"s_lshl_b32 s{sT0}, s{sT0}, 6",
          f"v_lshrrev_b32 v{ln+1}, 2, v{ln}", f"v_add_u32 v{ln+1}, s{sT0}, v{ln+1}", f"v_mul_u32_u24 v{vDH}, 3584, v{ln+1}",
          f"v_and_b32 v{ln+1}, 3, v{ln}", f"s_lshl_b32 s{sT0}, s{sStrip}, 1", f"v_xor_b32 v{ln+1}, s{sT0}, v{ln+1}",
          f"v_lshl_add_u32 v{vDH}, v{ln+1}, 4, v{vDH}")
        for j in range(1, 4): E(f"v_add_u32 v{vDH+j}, {j*(16*3584-1024)}, v{vDH}")
        E(f"s_lshl_b32 s{sT0}, s{sWave}, 13", f"s_add_u32 s{sT0}, s{sT0}, {MISC}",
          f"v_and_b32 v{ln+1}, 31, v{ln}", f"v_lshl_add_u32 v{ln+1}, v{ln+1}, 2, s{sT0}",
          f"v_sub_f32 v{a}, 0, v{vC1}", f"ds_write_b32 v{ln+1}, v{a}",
          f"v_lshrrev_b32 v{ln+2}, 5, v{ln}", f"v_lshl_add_u32 v{ln+2}, v{ln+2}, 4, s{sT0}",
          f"v_add_u32 v{ln}, s{sT0}, v{vLane16}",
          f"s_lshl_b32 s{sT0}, s{sWave}, 11", f"s_add_u32 s{sT0}, s{sT0}, {MISC}", f"v_add_u32 v{ln+1}, s{sT0}, v{vLane16}")
    else:
        ln = t + 16
        E(f"s_lshl_b32 s{sT0}, s{sWave}, 10", f"s_add_u32 s{sT0}, s{sT0}, {MISC}", f"v_add_u32 v{ln}, s{sT0}, v{vLane16}",
          f"v_add_u32 v{ln+1}, {MISC}, v{vLane16}")
    kvo = t + 19
    E(f"v_and_b32 v{a}, 15, v0", f"v_bfe_u32 v{b}, v0, 5, 1", f"v_lshl_add_u32 v{a}, v{b}, 4, v{a}", f"v_lshlrev_b32 v{a}, 4, v{a}",
      f"v_lshl_add_u32 v{b}, v{b}, 4, 0", f"v_add_u32 v{b}, 512, v{b}",
      f"v_bfe_u32 v{kvo}, v0, 4, 1", f"v_bfe_u32 v{s1}, v0, 6, 1", f"v_cmp_eq_u32 vcc, v{kvo}, v{s1}", f"v_cndmask_b32 v{kvo}, v{b}, v{a}, vcc")
    tmp = t + 20

    state = {'kv': 0}
    NG = 320
    for g in range(NG):
        n, m = divmod(g, 16)
        ps, kind, kk, u, _, _, _ = frag_info(typ, g)
        b_ = ACCB[typ][ps][u]
        if g == 128:
            S.flush('aw')
            if typ == 'A':
                S.add('epi', ["s_nop 0"] + silu_epi(0, sA1, 0, 'h10') + silu_epi(1, sA1, 1, 'h11'), prio=2)
                S.add('epi2', silu_epi(2, sA1, 2, 'h12') + silu_epi(3, sA1, 3, 'h13'), prio=1)
            else:
                ln = t + 16
                L = [Op(f"ds_read_b128 {vr(vCr+4*q,4)}, v{ln+2} offset:{32*q}", tag='cr') for q in range(4)]
                def kvpair(pr):
                    kb, vb = blk(pr), blk(2 + pr); pk, pv = 208, 216
                    L = phi_epi(pr, lambda r: f"v{vCr+r}", pk, tmp)
                    L[0] = Op(L[0], waits='cr')
                    for r in range(16): L.append(f"v_mul_f32 v{vb+r}, v{vCr+r}, v{vb+r}")
                    for j in range(8): L.append(f"v_cvt_pk_bf16_f32 v{pv+j}, v{vb+2*j}, v{vb+2*j+1}")
                    ones = 224
                    if pr == 0:
                        for j in range(4): L.append(f"v_mov_b32 v{ones+j}, 0x3f803f80")
                    L.append(Op(f"v_mfma_f32_32x32x16_bf16 {vr(kb,16)}, {vr(pk,4)}, {vr(pv,4)}, 0", cost=3))
                    L.append(Op(f"v_mfma_f32_32x32x16_bf16 {vr(vb,16)}, {vr(pk,4)}, {vr(ones,4)}, 0", cost=3))
                    L.append(Op(f"v_mfma_f32_32x32x16_bf16 {vr(kb,16)}, {vr(pk+4,4)}, {vr(pv+4,4)}, {vr(kb,16)}", cost=3))
                    L.append(Op(f"v_mfma_f32_32x32x16_bf16 {vr(vb,16)}, {vr(pk+4,4)}, {vr(ones,4)}, {vr(vb,16)}", cost=3))
                    L.append(Op("", cost=3)); L.append(Op("", cost=3)); L.append(Op("", cost=3))
                    for r in range(8): L.append(f"v_cndmask_b32 v{kb+r}, v{kb+r}, v{vb+r}, s[{sMaskHi}:{sMaskHi+1}]")
                    for r in range(8, 16): L.append(f"v_cndmask_b32 v{kb+r}, v{vb+r}, v{kb+r}, s[{sMaskHi}:{sMaskHi+1}]")
                    for q in range(4): L.append(Op(f"ds_write_b128 v{ln}, {vr(kb+4*q,4)} offset:{pr*4096+q*1024}", tag=f'kvw{pr}'))
                    return L
                S.add('epi', L + kvpair(0), prio=2)
                S.add('epi2', kvpair(1), prio=1, after='epi')
                state['kv'] = 1
        if g == 192:
            S.flush('epi')
            if typ == 'B': E(Op("", waits='kvw0'))
            if typ == 'A':
                S.add('epi3', phi_epi(4, lambda r: f"-v{vC1}", 192, tmp) + phi_epi(5, lambda r: f"-v{vC1}", 200, tmp), prio=0)
            else:
                S.add('epi3', silu_epi(4, sA2, 0, 'h20') + silu_epi(5, sA2, 1, 'h21'), prio=0)
        used = 0
        xop = vr(vX + 4 * kk, 4) if ps == 0 else ar(aXC + 4 * kk, 4)
        wop = ar(aW + 4 * (g % 8), 4)
        cin = "0" if kk == 0 else vr(blk(b_), 16)
        ops = (xop, wop) if kind == 'KV' else (wop, xop)
        w = [f"f{g+3}"] if g % 4 == 0 else []
        if w: used += 1
        E(Op(f"v_mfma_f32_32x32x16_bf16 {vr(blk(b_),16)}, {ops[0]}, {ops[1]}, {cin}", waits=w))
        if m == 10 and n + 1 < 20:
            w = [f"W{n+1}"]
            post = []
            if typ == 'B':
                if state['kv'] == 1 and S.pending('epi') == 0 and S.pending('epi2') == 0:
                    w.append('kvw1'); state['kv'] = 2
                    ln = t + 16; acc = 192
                    L = []
                    for src in range(4):
                        for rg in range(2): L.append(Op(f"ds_read_b128 {vr(acc+8*src+4*rg,4)}, v{ln+1} offset:{src*8192+rg*1024}", tag=f'kr{src}'))
                    for src in range(1, 4):
                        for r in range(8): L.append(Op(f"v_add_f32 v{acc+r}, v{acc+r}, v{acc+8*src+r}", waits=f'kr{src}' if r == 0 else ()))
                    for rg in range(2): L.append(Op(f"buffer_store_dwordx4 {vr(acc+4*rg,4)}, v{kvo}, {srd(sWS)}, s{sKvp} offen offset:{rg*640} sc1", tag='kvst'))
                    S.add('kvr', L, prio=3); state['kvn'] = n
                elif state['kv'] == 2 and S.pending('kvr') == 0 and n >= state['kvn'] + 2:
                    w.append('kvst'); state['kv'] = 3
                    post.append(signal(f"s{sCntKv}"))
            E(Op("s_barrier", waits=w)); used += 2
            E(post)
        if g + 6 < NG: E(frag_reads(typ, g + 6)); used += 2
        if g == 40: E(poll_issue("0", sDBG, 'pi')); used += 1
        if g == 100: E(poll_check("0", sDBG, 'pi', 1, f"init{typ}")); used += 3
        if ps == 0:
            if u == 0 and kk + 1 < 32: S.add('cv', center(kk + 1)[1], prio=5); S.add('aw', center(kk)[2], prio=-1)
            if u == 0 and kk == 31: S.add('aw', center(kk)[2], prio=-1)
            if u == 3:
                S.flush('cv')
                if kk + 2 < 32: E(center(kk + 2)[0]); used += 2
        if m == 11 or (m == 3 and nW < n + cfg.la):
            if nW < 20 and nW <= n + cfg.la:
                S.add('dma', w_dma(typ, nW, waits=f"xr{nW}" if nW < 8 else ()), prio=4); nW += 1
        bud = cfg.kv_budget if (state['kv'] == 1 or S.pending('kvr')) else cfg.budget
        S.fill(max(bud - used, 0))
    stamp(S, cfg, 2)
    S.flush()
    if typ == 'B':
        assert state['kv'] == 3, state
        print('; kv reduce at stage', state['kvn'])
    E("s_nop 7")
    for u in range(4): E(silu_epi(ACCB[typ][2][u], sA3, u, f'h3{u}'))
    last = 'h33'
    if typ == 'A':
        E(poll_issue(f"s{sCntKv}", sWS, 'pk'))
        E(poll_check(f"s{sCntKv}", sWS, 'pk', 16, "kv"))
        G = 64
        for rt in range(16):
            for rg in range(2):
                off = (rt % 3) * 1280 + rg * 640
                E(Op(f"buffer_load_dwordx4 {vr(G+8*rt+4*rg,4)}, v{kvo}, {srd(sWS)}, s{sKvp} offen offset:{off} sc1", tag=f'g{rt}', waits=last if rt == 0 and rg == 0 else ()))
            if rt % 3 == 2: E(f"s_add_u32 s{sKvp}, s{sKvp}, {3*1280}")
        for rt in range(1, 16):
            for r in range(8): E(Op(f"v_add_f32 v{G+r}, v{G+r}, v{G+8*rt+r}", waits=f'g{rt}' if r == 0 else ()))
        for j in range(4): E(f"v_cvt_pk_bf16_f32 v{G+8+j}, v{G+2*j}, v{G+2*j+1}")
        ln = t + 16
        E(Op(f"ds_write_b128 v{ln}, {vr(G+8,4)}", tag='ktw'))
        E(Op("s_barrier", waits='ktw'))
        for h in range(4): E(Op(f"ds_read_b128 {vr(208+4*h,4)}, v{ln+1} offset:{h*1024}", tag=f'kt{h}'))
        for h in range(4): E(Op(f"v_mfma_f32_32x32x16_bf16 {vr(blk(h),16)}, {vr(208+4*h,4)}, {vr(192+4*h,4)}, 0", waits=f'kt{h}'))
        for h in range(4):
            o = blk(h); num, den = (o, o + 8) if h % 2 == 0 else (o + 8, o)
            E(f"v_add_f32 v{den}, s{sEps6}, v{den}", f"v_rcp_f32 v{den}, v{den}", f"v_mul_f32 v{den}, s{sLn2}, v{den}")
            for r in range(8): E(f"v_mul_f32 v{num+r}, v{den}, v{num+r}")
            for j in range(4): E(f"v_cvt_pk_bf16_f32 v{den+4+j}, v{num+2*j}, v{num+2*j+1}")
            E(Op(f"buffer_store_dwordx4 {vr(den+4,4)}, v{vLane16}, {srd(sWS)}, s{sA2} offen offset:{h*1024} sc1", tag='ost'))
        last = 'ost'
    E(Op("s_barrier", waits=last))
    E(signal(f"s{sCntH}"))
    stamp(S, cfg, 3)
    return S.out

P2_ORDER = [(0, 0), (0, 2), (0, 12), (0, 14), (0, 20), (0, 22),
            (0, 4), (0, 6), (0, 8), (0, 10), (0, 16), (0, 18), (0, 24), (0, 26),
            (1, 0), (1, 2), (1, 4), (1, 6)]

def phase2(cfg):
    S = Sched(); E = S.emit
    t = vT
    ln, i7, i3, b1, sub = t, t + 1, t + 2, t + 3, t + 4
    E(f"v_and_b32 v{ln}, 63, v0", f"v_and_b32 v{i7}, 7, v{ln}", f"v_lshrrev_b32 v{i3}, 3, v{ln}", f"v_bfe_u32 v{b1}, v{ln}, 4, 1",
      f"v_lshlrev_b32 v{sub}, 2, v{b1}", f"v_xor_b32 v{sub}, v{i7}, v{sub}", f"v_lshlrev_b32 v{sub}, 4, v{sub}",
      f"v_lshl_add_u32 v{vDH}, v{i3}, 10, v{sub}")
    for j in range(1, 4): E(f"v_add_u32 v{vDH+j}, {j*7*1024}, v{vDH}")
    E(f"s_lshl_b32 s{sT0}, s{sC2}, 7",
      f"s_mul_i32 s{sB0}, s{sWave}, {448*1024}", f"s_add_u32 s{sB0}, s{sB0}, s{sT0}",
      f"s_lshl_b32 s{sB1}, s{sWave}, 17", f"s_add_u32 s{sB1}, s{sB1}, s{sT0}",
      f"s_mul_i32 s{sT1}, s{sR2}, {2*144*1024}",
      f"s_mul_i32 s{sAl0}, s{sWave}, {28*1024}", f"s_add_u32 s{sAl0}, s{sAl0}, s{sT1}",
      f"s_lshl_b32 s{sAl1}, s{sWave}, 13", f"s_add_u32 s{sAl1}, s{sAl1}, s{sT1}", f"s_add_u32 s{sAl1}, s{sAl1}, {112*1024}")
    def b_dma(n, waits=()):
        wo, kf = P2_ORDER[n]
        L = [Op(f"s_add_u32 m0, s{sM0}, {(n%8)*8192}"), Op(f"s_add_u32 s{sOff}, s{sB1 if wo else sB0}, {kf*16*1024}")]
        for j in range(4):
            L.append(Op(f"buffer_load_dwordx4 v{vDH+j}, {srd(sWO if wo else sWD)}, s{sOff} offen offset:{j*1024} lds", tag=f"B{n}", waits=waits if j == 0 else ()))
        return L
    for n in range(3): E(b_dma(n))
    E(poll_issue(f"s{sCntW}", sWS, 'ph'))
    hf, r4, rb, c4 = t + 5, t + 6, t + 7, t + 8
    vRB = vRF
    E(f"v_lshrrev_b32 v{hf}, 5, v{ln}", f"v_bfe_u32 v{r4}, v{ln}, 2, 2", f"v_lshrrev_b32 v{rb}, 1, v{r4}", f"v_and_b32 v{c4}, 3, v{ln}",
      f"v_lshl_or_b32 v{rb}, v{rb}, 1, v{b1}", f"v_lshlrev_b32 v{c4}, 3, v{c4}", f"v_lshl_add_u32 v{rb}, v{rb}, 5, v{c4}",
      f"v_lshl_add_u32 v{r4}, v{hf}, 2, v{r4}", f"v_lshl_add_u32 v{rb}, v{r4}, 7, v{rb}", f"v_add_u32 v{vRB}, s{sM0}, v{rb}",
      f"v_xor_b32 v{vRB+1}, 64, v{vRB}")
    vA2 = vRF + 2
    E(f"v_add_u32 v{vA2}, {144*1024}, v{vLane16}")
    vRes = vRF + 3
    E(f"s_lshl_b32 s{sRes}, s{sR2}, 2", f"s_add_u32 s{sRes}, s{sRes}, s{sWave}", f"s_lshl_b32 s{sRes}, s{sRes}, 14", f"s_lshl_b32 s{sT0}, s{sC2}, 7", f"s_add_u32 s{sRes}, s{sRes}, s{sT0}",
      f"v_lshlrev_b32 v{vRes}, 4, v{i7}", f"v_lshl_add_u32 v{vRes}, v{i3}, 10, v{vRes}", f"s_add_u32 s{sRes+1}, s{sRes}, 8192")
    E(poll_check(f"s{sCntW}", sWS, 'ph', 4, "h"))
    stamp(S, cfg, 4)
    vAr = 128; NA = 4
    def a_loads(n):
        wo, kf = P2_ORDER[n]
        L = [Op(f"s_add_u32 s{sT1}, s{sAl1 if wo else sAl0}, {kf*1024}")]
        for k in range(2):
            for rbk in range(2):
                r = vAr + 16 * (n % NA) + 8 * k + 4 * rbk
                L.append(Op(f"buffer_load_dwordx4 {vr(r,4)}, v{vA2 if rbk else vLane16}, {srd(sWS)}, s{sT1} offen offset:{k*1024} sc1", tag=f"A{n}_{k}"))
        return L
    def b_reads(n):
        L = []
        for k in range(2):
            for nf in range(2):
                r = aW + 16 * (n % 2) + 8 * k + 4 * nf
                for z in range(2):
                    L.append(Op(f"ds_read_b64_tr_b16 {ar(r+2*z,2)}, v{vRB+nf} offset:{(n%8)*8192+k*2048+z*1024}", tag=f"br{n}_{k}", waits=f"B{n}" if not L else ()))
        return L
    for n in range(2): E(a_loads(n))
    xr = 248
    E(b_reads(0))
    for n in range(18):
        if n + 2 < 18: S.add('ld', a_loads(n + 2))
        if n + 3 < 18: S.add('ld', b_dma(n + 3))
        if n == 15:
            S.add('ld', [Op(f"buffer_load_dwordx4 {vr(xr+4*m,4)}, v{vRes}, {srd(sX)}, s{sRes+m} offen", tag='res') for m in range(2)])
        if n + 1 < 18: S.add('ld', b_reads(n + 1))
        for k in range(2):
            for rbk in range(2):
                for nf in range(2):
                    d = blk(2 * rbk + nf)
                    cin = "0" if n == 0 and k == 0 else vr(d, 16)
                    w = [f"A{n}_{k}", f"br{n}_{k}"] if rbk == 0 and nf == 0 else []
                    E(Op(f"v_mfma_f32_32x32x16_bf16 {vr(d,16)}, {ar(aW+16*(n%2)+8*k+4*nf,4)}, {vr(vAr+16*(n%NA)+8*k+4*rbk,4)}, {cin}", waits=w))
                    S.fill(3)
        S.flush()
    stamp(S, cfg, 5)
    wa = 2
    s_, x_ = t + 9, t + 10
    E(f"v_and_b32 v{s_}, 15, v{ln}", f"v_xor_b32 v{x_}, v{hf}, v{s_}", f"v_lshlrev_b32 v{x_}, 4, v{x_}", f"v_lshl_add_u32 v{x_}, v{s_}, 8, v{x_}",
      f"v_lshl_add_u32 v{x_}, v{b1}, 13, v{x_}", f"v_add_u32 v{wa}, s{sM0}, v{x_}")
    for q in range(1, 8): E(f"v_xor_b32 v{wa+q}, {q*32}, v{wa}")
    ra = 192
    E(f"v_lshlrev_b32 v{x_}, 1, v{i7}", f"v_xor_b32 v{x_}, v{x_}, v{i3}", f"v_lshlrev_b32 v{x_}, 4, v{x_}", f"v_lshl_add_u32 v{x_}, v{i3}, 8, v{x_}",
      f"s_lshl_b32 s{sT0}, s{sWave}, 13", f"v_add_u32 v{ra}, s{sT0}, v{x_}", f"v_xor_b32 v{ra+1}, 16, v{ra}",
      f"v_xor_b32 v{ra+2}, {2048+128}, v{ra}", f"v_xor_b32 v{ra+3}, {2048+128}, v{ra+1}")
    for q in range(4): E(f"v_add_u32 v{ra+4+q}, 65536, v{ra+q}")
    for rbk in range(2):
        for nf in range(2):
            for g in range(4):
                E(Op(f"ds_write_b128 v{wa+4*nf+g}, {vr(blk(2*rbk+nf)+4*g,4)} offset:{rbk*16384}", tag='rw'))
    E(Op("s_barrier", waits='rw'))
    P = 128
    for src in range(4):
        for q in range(4):
            E(Op(f"ds_read_b128 {vr(P+16*src+4*q,4)}, v{ra+4*(src>>1)+q} offset:{(src&1)*4096}", tag=f'rr{src}'))
    for d in range(8):
        E(Op(f"v_lshlrev_b32 v{64+2*d}, 16, v{xr+d}", waits='res' if d == 0 else ()), f"v_and_b32 v{65+2*d}, 0xffff0000, v{xr+d}")
    for src in range(4):
        for r in range(16): E(Op(f"v_add_f32 v{64+r}, v{64+r}, v{P+16*src+r}", waits=f'rr{src}' if r == 0 else ()))
    for d in range(8): E(f"v_cvt_pk_bf16_f32 v{80+d}, v{64+2*d}, v{65+2*d}")
    for m in range(2): E(f"buffer_store_dwordx4 {vr(80+4*m,4)}, v{vRes}, {srd(sOUT)}, s{sRes+m} offen")
    stamp(S, cfg, 6)
    if cfg.diag_total:
        E("s_waitcnt vmcnt(0)"); stamp(S, cfg, 7)
        E("s_sub_u32 s90, s90, s94", "s_lshl_b32 s90, s90, 3", "s_min_u32 s90, s90, 100000", f"s_add_u32 s90, s90, {cfg.diag_total}",
          "L_diag:", "s_memrealtime s[94:95]", "s_waitcnt lgkmcnt(0)", "s_sub_u32 s94, s94, s100", "s_cmp_lt_u32 s94, s90", "s_cbranch_scc1 L_diag")
    if cfg.stamps:
        E("s_waitcnt vmcnt(0)"); stamp(S, cfg, 7)
    return S.out

def generate(cfg):
    del SLOW[:]
    pre = prologue(cfg)
    for c in range(cfg.la_x): pre += dma_stage(c, vDH, sX, f"X{c}", step=128 if c else None)
    pre += setup2(cfg)
    pre += [f"s_cmp_eq_u32 s{sType}, 0", "s_cbranch_scc0 L_typeB"]
    npre = len(finalize(pre))
    pa = finalize(pre + phase1('A', cfg) + ["s_waitcnt vmcnt(0) lgkmcnt(0)"], True)
    pb = finalize(pre + phase1('B', cfg) + ["s_waitcnt vmcnt(0) lgkmcnt(0)"], True)
    assert pa[:npre] == pb[:npre]
    p2 = finalize(phase2(cfg), True)
    body = pa + ["s_branch L_phase2", "L_typeB:"] + pb[npre:] + ["L_phase2:"] + p2 + ["s_endpgm"] + SLOW + ["L_end:"]
    hdr = open('header.txt').read()
    txt = hdr + "; @launch grid=(256,1,1) block=(256,1,1) lds=163840\n"
    txt += f""".amdgcn_target "amdgcn-amd-amdhsa--gfx950"
.text
.globl {NAME}_kernel
.p2align 8
.type {NAME}_kernel,@function
{NAME}_kernel:
"""
    txt += "\n".join(("" if l.endswith(':') else "    ") + l for l in body)
    txt += f"""
    s_endpgm
.section .rodata,"a"
.p2align 6
.amdhsa_kernel {NAME}_kernel
  .amdhsa_next_free_vgpr 512
  .amdhsa_next_free_sgpr 102
  .amdhsa_accum_offset 256
  .amdhsa_group_segment_fixed_size 0
  .amdhsa_kernarg_size 80
  .amdhsa_user_sgpr_count 2
  .amdhsa_user_sgpr_kernarg_segment_ptr 1
  .amdhsa_system_sgpr_workgroup_id_x 1
.end_amdhsa_kernel
"""
    return txt

if __name__ == '__main__':
    cfg = Cfg()
    out = sys.argv[1] if len(sys.argv) > 1 else 'k1.s'
    for a in sys.argv[2:]:
        k, v = a.split('='); setattr(cfg, k, int(v))
    open(out, 'w').write(generate(cfg))
```
